```python
import torch

def _softmax(x, axis=-1):
    return torch.softmax(x, dim=axis)
def _gelu(x):
    return torch.nn.functional.gelu(x, approximate="tanh")
def _silu(x):
    return torch.nn.functional.silu(x)
def _sigmoid(x):
    return torch.sigmoid(x)
def _layernorm(x, axis=-1, eps=1e-5):
    m = x.mean(dim=axis, keepdim=True)
    v = x.var(dim=axis, keepdim=True, unbiased=False)
    return (x - m) / torch.sqrt(v + eps)
def _scatter_add(tgt, idx, src, axis=0):
    return tgt.clone().index_add_(axis, idx, src)
def _segment_sum(src, seg, n):
    out = torch.zeros((n,) + src.shape[1:], dtype=src.dtype)
    return out.index_add_(0, seg, src)
def _pad(x, pw):
    flat = tuple(v for pair in reversed(pw) for v in pair)
    return torch.nn.functional.pad(x, flat)

kernel_name = 'interleave_layers__sliding_block_cached__glu_gated_glu__decode'

def setup_inputs():

    _w = (lambda a: (lambda t: t.to(torch.bfloat16) if t.is_floating_point() else t)(torch.as_tensor(a)))
    def _A_setup():
        B, Sq, D = 8, 1, 512
        Hq, Hkv, Sk, Dh = 32, 8, 8192, 128
        assert Hq % Hkv == 0, (Hq, Hkv)
        return {
            "x": _w((lambda *s: torch.randn(*s, dtype=torch.bfloat16) * 0.05)(B, Sq, D)),
            "k_cache": _w((lambda *s: torch.randn(*s, dtype=torch.bfloat16) * 1.6)(B, Hkv, Sk, Dh)),
            "v_cache": _w((lambda *s: torch.randn(*s, dtype=torch.bfloat16) * 1.6)(B, Hkv, Sk, Dh)),
            "wq": _w((lambda *s: torch.randn(*s, dtype=torch.bfloat16) * 1.6)(D, Hq * Dh) * (D ** -0.5)),
            "wo": _w((lambda *s: torch.randn(*s, dtype=torch.bfloat16) * 1.6)(Hq * Dh, D) * ((Hq * Dh) ** -0.5)),
        }
    _A_in = _A_setup()

    def _B_setup():
        B, S, D, F = 8, 1, 512, 1792
        return {
            "x": _w((lambda *s: torch.randn(*s, dtype=torch.bfloat16) * 0.05)(B, S, D)),
            "w_gate": _w((lambda *s: torch.randn(*s, dtype=torch.bfloat16) * 0.05)(D, F)),
            "w_up": _w((lambda *s: torch.randn(*s, dtype=torch.bfloat16) * 0.05)(D, F)),
            "w_down": _w((lambda *s: torch.randn(*s, dtype=torch.bfloat16) * 0.05)(F, D)),
        }
    _B_in = _B_setup()

    return {
        "A_x": _A_in["x"],
        "A_k_cache": _A_in["k_cache"],
        "A_v_cache": _A_in["v_cache"],
        "A_wq": _A_in["wq"],
        "A_wo": _A_in["wo"],
        "B_x": _B_in["x"],
        "B_w_gate": _B_in["w_gate"],
        "B_w_up": _B_in["w_up"],
        "B_w_down": _B_in["w_down"],
    }

def reference(A_x, A_k_cache, A_v_cache, A_wq, A_wo, B_x, B_w_gate, B_w_up, B_w_down):
    def _A_ref(x, k_cache, v_cache, wq, wo):
        B, Sq, D = x.shape
        Hq, Dh = 32, 128
        Hkv, Sk = k_cache.shape[1], k_cache.shape[2]
        W = min(4096, max(256, Sk // 4))
        rep = Hq // Hkv
        q = (lambda x, *d: x.permute(*d))((x @ wq).reshape(B, Sq, Hq, Dh), 0, 2, 1, 3)
        k = (lambda x, n, axis: torch.repeat_interleave(x, n, dim=axis))(k_cache[:, :, Sk - W:, :], rep, axis=1)
        v = (lambda x, n, axis: torch.repeat_interleave(x, n, dim=axis))(v_cache[:, :, Sk - W:, :], rep, axis=1)
        scores = torch.einsum("bhqd,bhkd->bhqk", q, k) * (Dh ** -0.5)
        p = _softmax(scores, axis=-1)
        o = torch.einsum("bhqk,bhkd->bhqd", p, v)
        return (lambda x, *d: x.permute(*d))(o, 0, 2, 1, 3).reshape(B, Sq, Hq * Dh) @ wo

    def _B_ref(x, w_gate, w_up, w_down):
        g = torch.einsum("bsd,df->bsf", x, w_gate)
        u = torch.einsum("bsd,df->bsf", x, w_up)
        h = _sigmoid(g) * u
        return torch.einsum("bsf,fd->bsd", h, w_down)

    x = A_x
    x = x + _A_ref(_layernorm(x, axis=-1), A_k_cache, A_v_cache, A_wq, A_wo)
    x = x + _B_ref(_layernorm(x, axis=-1), B_w_gate, B_w_up, B_w_down)
    x = x + _A_ref(_layernorm(x, axis=-1), A_k_cache, A_v_cache, A_wq, A_wo)
    x = x + _B_ref(_layernorm(x, axis=-1), B_w_gate, B_w_up, B_w_down)
    return x
```

```python
import re

REG_RE = re.compile(r"^(-|\|)?(v|s|a)(\d+|\[(\d+):(\d+)\])\|?$")


def regs_of(tok):
    tok = tok.strip()
    neg = tok.lstrip("-").strip("|")
    if neg in ("vcc",):
        return {("s", 106), ("s", 107)}
    if neg == "vcc_lo":
        return {("s", 106)}
    if neg == "vcc_hi":
        return {("s", 107)}
    if neg == "exec":
        return {("s", 126), ("s", 127)}
    if neg == "exec_lo":
        return {("s", 126)}
    if neg == "exec_hi":
        return {("s", 127)}
    if neg == "m0":
        return {("s", 124)}
    m = re.match(r"^(v|s)(\d+)$", neg)
    if m:
        return {(m.group(1), int(m.group(2)))}
    m = re.match(r"^(v|s)\[(\d+):(\d+)\]$", neg)
    if m:
        return {(m.group(1), i) for i in range(int(m.group(2)), int(m.group(3)) + 1)}
    return set()


TRANS = ("v_exp_f32", "v_log_f32", "v_rcp_f32", "v_rsq_f32", "v_sqrt_f32", "v_sin_f32", "v_cos_f32")


class Ins:
    def __init__(self, text):
        self.text = text
        t = text.split(";")[0].strip()
        self.is_label = t.endswith(":")
        self.is_dir = t.startswith(".")
        self.mn = t.split()[0] if t else ""
        rest = t[len(self.mn):].strip()
        ops = []
        cur = ""
        depth = 0
        for ch in rest:
            if ch == "[":
                depth += 1
            if ch == "]":
                depth -= 1
            if ch == "," and depth == 0:
                ops.append(cur.strip())
                cur = ""
            else:
                cur += ch
        if cur.strip():
            ops.append(cur.strip())
        self.mods = ""
        if ops:
            parts = ops[-1].split()
            if len(parts) > 1:
                ops[-1] = parts[0]
                self.mods = " ".join(parts[1:])
        self.ops = ops
        self.classify()

    def classify(self):
        mn = self.mn
        self.kind = "other"
        self.vw = set(); self.vr = set(); self.sw = set(); self.sr = set()
        self.states = 1
        self.dpp = False
        R = [regs_of(o) for o in self.ops]

        def split(sets):
            v = set(); s = set()
            for x in sets:
                for r in x:
                    (v if r[0] == "v" else s).add(r)
            return v, s
        if self.is_label or self.is_dir or not mn:
            self.kind = "none"; self.states = 0
            return
        if mn == "s_nop":
            self.kind = "nop"; self.states = int(self.ops[0], 0) + 1
            return
        if mn.startswith("v_mfma"):
            self.kind = "mfma"
            self.vw = R[0]
            self.A, _ = split([R[1]]); self.B, _ = split([R[2]]); self.C, _ = split([R[3]])
            self.vr = self.A | self.B | self.C
            return
        if mn.startswith("v_"):
            self.kind = "valu"
            self.trans = mn.replace("_e32", "").replace("_e64", "") in TRANS
            self.dpp = ("dpp" in mn) or any(k in self.mods for k in ("row_", "quad_perm", "wave_"))
            self.perm = mn.startswith("v_permlane")
            self.rdlane = mn.startswith("v_readlane") or mn.startswith("v_readfirstlane")
            if mn.startswith("v_cmp"):
                _, self.sw = split([R[0]])
                self.vr, self.sr = split(R[1:])
            elif self.rdlane:
                _, self.sw = split([R[0]])
                self.vr, self.sr = split(R[1:])
            elif self.perm:
                self.vw = R[0] | R[1]
                self.vr = R[0] | R[1]
            else:
                dv, ds = split([R[0]])
                self.vw = dv; self.sw = ds
                srcs = R[1:]
                if mn.startswith("v_add_co") or mn.startswith("v_addc_co") or mn.startswith("v_sub_co"):
                    _, s2 = split([R[1]])
                    self.sw |= s2
                    srcs = R[2:]
                self.vr, self.sr = split(srcs)
                if mn.startswith("v_fmac") or mn.startswith("v_writelane") or self.dpp or "dot2c" in mn:
                    self.vr |= dv
                if mn.startswith("v_cndmask") and len(self.ops) == 3:
                    self.sr |= {("s", 106), ("s", 107)}
            return
        if mn.startswith("buffer_") or mn.startswith("global_") or mn.startswith("flat_"):
            self.kind = "vmem"
            self.lds = "lds" in self.mods.split()
            is_store = "store" in mn
            is_atomic = "atomic" in mn
            if mn.startswith("buffer_"):
                if self.lds:
                    self.vr, self.sr = split(R)
                    self.sr |= {("s", 124)}
                elif is_store or is_atomic:
                    self.vr, self.sr = split(R)
                    self.data = R[0]
                else:
                    self.vw, _ = split([R[0]])
                    self.vr, self.sr = split(R[1:])
            else:
                if is_store or is_atomic:
                    self.vr, self.sr = split(R)
                    self.data = R[1]
                else:
                    self.vw, _ = split([R[0]])
                    self.vr, self.sr = split(R[1:])
            self.wide_store = is_store and ("x4" in mn or "x3" in mn)
            return
        if mn.startswith("ds_"):
            self.kind = "ds"
            if "read" in mn or "bpermute" in mn or "swizzle" in mn:
                self.vw, _ = split([R[0]])
                self.vr, _ = split(R[1:])
            else:
                self.vr, _ = split(R)
            return
        if mn.startswith("s_"):
            self.kind = "salu"
            if mn.startswith("s_cbranch") or mn.startswith("s_branch") or mn in ("s_barrier", "s_endpgm", "s_sleep", "s_setprio") or mn.startswith("s_waitcnt"):
                self.kind = "ctl"
                return
            if mn.startswith("s_cmp") or mn.startswith("s_bitcmp"):
                _, self.sr = split(R)
            else:
                _, self.sw = split([R[0]])
                _, self.sr = split(R[1:])
            return


class Asm:
    def __init__(self):
        self.lines = []
        self.uid = 0

    def __call__(self, text):
        for l in text.split("\n"):
            l = l.strip()
            if l:
                self.lines.append(l)

    def label(self, name):
        self.lines.append(name + ":")

    def newlabel(self, base):
        self.uid += 1
        return f"{base}_{self.uid}"

    def finalize(self, verbose=False):
        out = []
        hist = []
        nadded = 0
        for t in self.lines:
            if t.startswith(";"):
                out.append(t)
                continue
            ins = Ins(t)
            if ins.kind == "none":
                out.append(t)
                continue
            need = 0
            dist = 0
            for p in reversed(hist):
                req = self.required(p, ins)
                if req > dist:
                    need = max(need, req - dist)
                dist += p.states
                if dist > 24:
                    break
            if need > 0:
                nadded += 1
                n = need
                while n > 0:
                    k = min(n, 16)
                    nop = Ins(f"s_nop {k-1}")
                    out.append(f"s_nop {k-1}")
                    hist.append(nop)
                    n -= k
            out.append(t)
            hist.append(ins)
            if len(hist) > 64:
                hist = hist[-40:]
        if verbose:
            print(f"; hazard nops inserted at {nadded} sites")
        return out

    @staticmethod
    def required(p, c):
        req = 0
        if p.kind == "valu":
            if c.kind == "mfma" and (p.vw & c.vr):
                req = max(req, 2)
            if c.kind == "valu":
                if p.trans and not c.trans and (p.vw & c.vr):
                    req = max(req, 1)
                if c.dpp and (p.vw & c.vr):
                    req = max(req, 2)
                if c.perm and (p.vw & c.vr):
                    req = max(req, 2)
                if c.rdlane and (p.vw & c.vr):
                    req = max(req, 1)
                if p.sw & c.sr:
                    req = max(req, 4 if (c.rdlane or c.mn.startswith("v_writelane")) else 2)
                if p.dpp and False:
                    pass
            if c.kind == "vmem" and (p.sw & c.sr):
                req = max(req, 5)
            if c.kind == "salu" and (p.sw & c.sr):
                req = max(req, 1)
        if p.kind == "mfma":
            if c.kind == "valu" and (p.vw & (c.vr | c.vw)):
                req = max(req, 8)
            if c.kind in ("vmem", "ds") and (p.vw & (c.vr | c.vw)):
                req = max(req, 8)
            if c.kind == "mfma":
                if p.vw & (c.A | c.B):
                    req = max(req, 8)
                if (p.vw & c.C) and (p.vw != c.C):
                    req = max(req, 6)
            if c.kind == "valu" and (p.C & c.vw):
                req = max(req, 3)
        if p.kind == "salu":
            if ("s", 124) in p.sw and c.kind == "vmem" and getattr(c, "lds", False):
                req = max(req, 1)
            if (p.sw & {("s", 126), ("s", 127)}) and c.kind == "valu" and c.dpp:
                req = max(req, 1)
        if p.kind == "vmem" and getattr(p, "wide_store", False):
            if c.kind == "valu" and (p.data & c.vw):
                req = max(req, 2)
            if c.kind in ("ds", "vmem") and (p.data & c.vw):
                req = max(req, 1)
        return req
```

```python
import sys
from asmlib import Asm

opts = dict(a.split("=") for a in sys.argv[1:] if "=" in a)
PROFILE = int(opts.get("prof", "0"))
STOP = opts.get("stop", "")
DLY_AR = int(opts.get("dlyar", "4"))
FORCE_SLOW = int(opts.get("slow", "0"))
PREWARM = int(opts.get("prewarm", "1"))

KN = "interleave_layers__sliding_block_cached__glu_gated_glu__decode_kernel"
A = Asm()

WQI = 131072
QBUF = 147456
STAT = 148608
FLAG = 148864
PART = 150528
LDS_TOTAL = 163840
W_WO, W_G, W_U, W_D, W_OP = 0, 4096, 8192, 12288, 14336

G_Q, G_XA, G_ON, G_H, G_OP = 0x0, 0x4000, 0xA000, 0xE000, 0x10000
OPS = 2176
AR_BASE = 0x200000
TS_BASE = 0x400000

sW, sG, sJ, sB, sS = "s3", "s4", "s5", "s6", "s7"
P_X, P_K, P_V, P_WQ, P_WO, P_WG, P_WU, P_WD, P_OUT, P_DBG, P_WS = 8, 10, 12, 14, 16, 20, 22, 24, 26, 28, 30
S_K, S_V, S_G, S_AR, S_T, S_T2 = 32, 36, 40, 44, 48, 52
sMODE, sL, sSPIN, sCW = "s56", "s57", "s58", "s59"
sTILE = [60, 61, 62, 63]
M_X, M_NX = "s[64:65]", "s[66:67]"
sC1, sINV512, sEPS, sNLOG2E = "s68", "s69", "s70", "s71"
sOQ, sOXA, sOOP, sOON, sOH, sOAR1, sOAR2, sOXO1, sOXO2 = ("s%d" % i for i in range(72, 81))
sDELTA = "s81"
sT0, sT1, sT2, sT3, sT4, sT5 = ("s%d" % i for i in range(84, 90))
sTS = "s[90:91]"


def srd(n):
    return f"s[{n}:{n+3}]"


vLANE = "v1"
vXOFF, vHOFF, vQOFF, vOPW, vOPR0, vOPR1, vOPS, vPW, vWOWN, vWQ = ("v%d" % i for i in range(2, 12))
vFA, vAST, vALD, vXST, vXO0, vXO1 = ("v%d" % i for i in range(12, 18))
vH1a, vH1b, vH1sa, vH1sb, vONS = ("v%d" % i for i in range(18, 23))
vFS1, vFS2, vFC, vFG, vFCG, vHST = ("v%d" % i for i in range(23, 29))
vSTW, vSTR = "v29", "v30"
vKq = ["v32", "v33", "v34", "v35"]
vVq = ["v36", "v37"]
vKr = ["v38", "v39", "v40", "v41"]
vVr0 = "v42"
vT = ["v%d" % i for i in range(44, 56)]
ONES = 56
DUMMY = 60
vTS = "v31"
KREG, VREG = 64, 128
WK = 192


def vq(n, c=4):
    return f"v[{n}:{n+c-1}]"


def ts(idx):
    if not PROFILE:
        return
    A(f"s_memrealtime {sTS}")
    A("s_waitcnt lgkmcnt(0)")
    A(f"v_writelane_b32 {vTS}, s90, {idx}")


def make_srd(dst, ptr, off_sgpr=None, size=None, off_imm=None):
    if off_sgpr is not None:
        A(f"s_add_u32 s{dst}, s{ptr}, {off_sgpr}")
        A(f"s_addc_u32 s{dst+1}, s{ptr+1}, 0")
    elif off_imm is not None:
        A(f"s_add_u32 s{dst}, s{ptr}, {hex(off_imm)}")
        A(f"s_addc_u32 s{dst+1}, s{ptr+1}, 0")
    else:
        A(f"s_mov_b32 s{dst}, s{ptr}")
        A(f"s_mov_b32 s{dst+1}, s{ptr+1}")
    if isinstance(size, int):
        A(f"s_mov_b32 s{dst+2}, {hex(size)}")
    else:
        A(f"s_mov_b32 s{dst+2}, {size}")
    A(f"s_mov_b32 s{dst+3}, 0x20000")


def group_store(instr_plain):
    lf = A.newlabel("L_gsf")
    le = A.newlabel("L_gse")
    A(f"s_cmp_eq_u32 {sMODE}, 1")
    A(f"s_cbranch_scc1 {lf}")
    A(instr_plain + " sc1")
    A(f"s_branch {le}")
    A.label(lf)
    A(instr_plain)
    A.label(le)


def sanitize(v):
    A(f"v_min_u32 {v}, {vSENT}, {v}")


def max_tree(regs, dst):
    regs = list(regs)
    A(f"v_max3_u32 {dst}, v{regs[0]}, v{regs[1]}, v{regs[2]}")
    i = 3
    while i < len(regs):
        if i + 1 < len(regs):
            A(f"v_max3_u32 {dst}, {dst}, v{regs[i]}, v{regs[i+1]}")
            i += 2
        else:
            A(f"v_max_u32 {dst}, {dst}, v{regs[i]}")
            i += 1


def poll(issue, regs, pre_sleep=0):
    lp = A.newlabel("L_poll")
    if pre_sleep:
        A(f"s_sleep {pre_sleep}")
    A.label(lp)
    issue()
    A(f"s_sub_u32 {sSPIN}, {sSPIN}, 1")
    A("s_cbranch_scc1 L_END")
    A("s_waitcnt vmcnt(0)")
    max_tree(regs, vT[0])
    A(f"v_cmp_eq_u32 vcc, -1, {vT[0]}")
    A(f"s_cbranch_vccnz {lp}")


vSENT = "v43"

A(f"; @launch grid=(256,1,1) block=(512,1,1) lds={LDS_TOTAL}")
A('.amdgcn_target "amdgcn-amd-amdhsa--gfx950"')
A(".text")
A(f".globl {KN}")
A(".p2align 8")
A(f".type {KN},@function")
A(f"{KN}:")
A("s_cmp_ge_u32 s2, 256")
A("s_cbranch_scc1 L_END")
A("s_load_dwordx16 s[8:23], s[0:1], 0")
A("s_load_dwordx8 s[24:31], s[0:1], 64")
A(f"v_and_b32 {vLANE}, 63, v0")
A(f"v_lshrrev_b32 {vT[0]}, 6, v0")
A(f"v_readfirstlane_b32 {sW}, {vT[0]}")
A(f"s_and_b32 {sG}, s2, 7")
A(f"s_lshr_b32 {sJ}, s2, 3")
A(f"s_lshr_b32 {sB}, {sJ}, 2")
A(f"s_and_b32 {sS}, {sJ}, 3")
if PROFILE:
    A(f"v_mov_b32 {vTS}, 0")
ts(0)
A(f"v_mov_b32 {vT[1]}, {FLAG}")
A(f"v_mov_b32 {vT[2]}, 0")
A(f"ds_write_b32 {vT[1]}, {vT[2]}")
vI, vSl = vT[3], vT[4]
A(f"v_and_b32 {vI}, 15, {vLANE}")
A(f"v_lshrrev_b32 {vSl}, 4, {vLANE}")
A(f"v_xor_b32 {vT[5]}, {vI}, {vSl}")
A(f"v_lshlrev_b32 {vT[5]}, 4, {vT[5]}")
A(f"v_lshl_add_u32 {vKq[0]}, {vSl}, 8, {vT[5]}")
for q in range(1, 4):
    A(f"v_xor_b32 {vKq[q]}, {q << 6}, {vKq[0]}")
A(f"v_lshlrev_b32 {vT[5]}, 1, {vSl}")
A(f"v_xor_b32 {vT[5]}, {vI}, {vT[5]}")
A(f"v_lshlrev_b32 {vT[5]}, 4, {vT[5]}")
A(f"v_lshl_add_u32 {vVq[0]}, {vSl}, 8, {vT[5]}")
A(f"v_xor_b32 {vVq[1]}, 0x80, {vVq[0]}")
A("s_waitcnt lgkmcnt(0)")
A("s_barrier")
A(f"s_lshl_b32 {sT0}, {sB}, 3")
A(f"s_add_u32 {sT0}, {sT0}, {sG}")
A(f"s_lshl_b32 {sT0}, {sT0}, 21")
A(f"s_lshl_b32 {sT1}, {sS}, 17")
A(f"s_add_u32 {sT0}, {sT0}, {sT1}")
A(f"s_add_u32 {sT0}, {sT0}, 0x180000")
make_srd(S_K, P_K, off_sgpr=sT0, size=0x20000)
make_srd(S_V, P_V, off_sgpr=sT0, size=0x20000)
A(f"s_lshl_b32 {sT0}, {sG}, 18")
make_srd(S_G, P_WS, off_sgpr=sT0, size=0x40000)
A(f"s_lshl_b32 {sT0}, {sJ}, 12")
A(f"s_add_u32 {sT0}, {sT0}, {hex(AR_BASE)}")
make_srd(S_AR, P_WS, off_sgpr=sT0, size=0x61000)
A(f"s_lshl_b32 {sT0}, {sW}, 2")
A(f"s_add_u32 {sT0}, {sT0}, {sJ}")
for T in range(4):
    A(f"s_add_u32 s{sTILE[T]}, {sT0}, {T}")
    A(f"s_and_b32 s{sTILE[T]}, s{sTILE[T]}, 31")
    A(f"s_lshl_b32 s{sTILE[T]}, s{sTILE[T]}, 12")
A(f"s_mov_b32 {sSPIN}, 0x200000")
A(f"s_mov_b32 s64, 0x00ff00ff")
A(f"s_mov_b32 s65, 0x00ff00ff")
A(f"s_mov_b32 s66, 0xff00ff00")
A(f"s_mov_b32 s67, 0xff00ff00")
A(f"s_sub_u32 {sCW}, {sW}, 4")
A(f"s_lshl_b32 {sT5}, {sW}, 14")

A(f"s_cmp_eq_u32 {sW}, 0")
A("s_cbranch_scc0 L_STREAM")

A(f"s_mov_b32 {sC1}, 0x3e0293ee")
A(f"s_mov_b32 {sINV512}, 0x3b000000")
A(f"s_mov_b32 {sEPS}, 0x3727c5ac")
for i in range(4):
    A(f"v_mov_b32 v{DUMMY+i}, -1")
A(f"s_mul_i32 {sT0}, {sJ}, 7168")
A(f"v_lshl_add_u32 {vT[5]}, {vLANE}, 4, {sT0}")
for i in range(4):
    A(f"buffer_store_dwordx4 {vq(DUMMY)}, {vT[5]}, {srd(S_G)}, 0 offen offset:{i*1024} sc1")
A(f"s_mov_b32 {sT1}, 4096")
for i in range(3):
    A(f"buffer_store_dwordx4 {vq(DUMMY)}, {vT[5]}, {srd(S_G)}, {sT1} offen offset:{i*1024} sc1")
A(f"v_and_b32 {vT[6]}, 31, {vLANE}")
A(f"v_lshlrev_b32 {vT[6]}, 4, {vT[6]}")
A(f"v_lshrrev_b32 {vT[7]}, 5, {vLANE}")
A(f"v_lshl_add_u32 {vT[6]}, {vT[7]}, 17, {vT[6]}")
A(f"s_lshl_b32 {sT0}, {sG}, 9")
A(f"v_add_u32 {vT[6]}, {sT0}, {vT[6]}")
A(f"buffer_store_dwordx4 {vq(DUMMY)}, {vT[6]}, {srd(S_AR)}, 0 offen sc1")
A(f"s_mov_b32 {sT1}, 0x40000")
A(f"buffer_store_dwordx4 {vq(DUMMY)}, {vT[6]}, {srd(S_AR)}, {sT1} offen sc1")
A(f"s_lshl_b32 {sT0}, {sG}, 10")
A(f"s_lshl_b32 {sT1}, {sJ}, 5")
A(f"s_add_u32 {sT0}, {sT0}, {sT1}")
A(f"s_sub_u32 {sT1}, 0x400000, {sT0}")
make_srd(S_T, P_WQ, off_sgpr=sT0, size=sT1)
A(f"v_lshrrev_b32 {vT[7]}, 1, {vLANE}")
A(f"v_and_b32 {vT[8]}, 1, {vLANE}")
A(f"v_lshlrev_b32 {vT[8]}, 4, {vT[8]}")
A(f"v_lshl_add_u32 {vT[7]}, {vT[7]}, 13, {vT[8]}")
for i in range(16):
    A(f"s_mov_b32 m0, {WQI + i*1024}")
    A(f"s_mov_b32 {sT1}, {i*32*8192}")
    A(f"buffer_load_dwordx4 {vT[7]}, {srd(S_T)}, {sT1} offen lds")
make_srd(S_T2, P_X, size=8192)
A(f"v_lshrrev_b32 {vT[8]}, 3, {vLANE}")
A(f"v_and_b32 {vT[9]}, 7, {vLANE}")
A(f"v_lshlrev_b32 {vT[9]}, 2, {vT[9]}")
A(f"v_lshl_add_u32 {vXST}, {vT[8]}, 10, {vT[9]}")
A(f"s_lshl_b32 {sT0}, {sJ}, 5")
A(f"v_add_u32 {vXST}, {sT0}, {vXST}")
A(f"buffer_load_dword {vXO0}, {vXST}, {srd(S_T2)}, 0 offen")
A(f"s_mov_b64 exec, {M_NX}")
A(f"v_mov_b32 {vT[8]}, 0x3f803f80")
for t in range(64):
    A(f"v_mov_b32 v{KREG+t}, {vT[8]}")
A(f"s_mov_b64 exec, {M_X}")
A(f"v_lshlrev_b32 {vT[8]}, 10, {vI}")
A(f"v_lshl_add_u32 {vT[8]}, {vSl}, 4, {vT[8]}")
for t in range(16):
    A(f"buffer_load_dwordx4 {vq(KREG+4*t)}, {vT[8]}, {srd(S_T2)}, 0 offen offset:{t*64}")
A("s_mov_b64 exec, -1")
A("s_waitcnt vmcnt(33)")
A("s_getreg_b32 s84, hwreg(HW_REG_XCC_ID, 0, 4)")
if FORCE_SLOW:
    A(f"s_lshr_b32 {sT1}, {sJ}, 4")
    A(f"s_xor_b32 {sT0}, {sT0}, {sT1}")
A(f"s_mul_i32 {sT1}, {sT0}, {sT0}")
A(f"s_lshl_b32 {sT1}, {sT1}, 14")
A(f"s_lshl_b32 {sT0}, {sT0}, 6")
A(f"s_or_b32 {sT0}, {sT0}, {sT1}")
A(f"s_or_b32 {sT4}, {sT0}, 1")
make_srd(S_T, P_DBG, size=256)
A(f"v_mov_b32 {vT[9]}, {sT4}")
A(f"s_lshl_b32 {sT0}, {sG}, 2")
A(f"v_mov_b32 {vT[10]}, {sT0}")
A("s_mov_b64 exec, 1")
A(f"buffer_atomic_add {vT[9]}, {vT[10]}, {srd(S_T)}, 0 offen sc1")
A("s_mov_b64 exec, -1")
ts(1)
A(f"v_lshrrev_b32 {vT[9]}, 2, {vI}")
A(f"v_lshl_add_u32 {vT[9]}, {vSl}, 3, {vT[9]}")
A(f"v_lshlrev_b32 {vT[9]}, 5, {vT[9]}")
A(f"v_and_b32 {vT[10]}, 3, {vLANE}")
A(f"v_lshl_add_u32 {vT[9]}, {vT[10]}, 3, {vT[9]}")
A(f"v_add_u32 {vT[9]}, {WQI}, {vT[9]}")
A("s_waitcnt vmcnt(1)")
for t in range(16):
    A(f"ds_read_b64_tr_b16 v[{VREG+4*t}:{VREG+4*t+1}], {vT[9]} offset:{t*1024}")
    A(f"ds_read_b64_tr_b16 v[{VREG+4*t+2}:{VREG+4*t+3}], {vT[9]} offset:{t*1024+128}")
A("s_waitcnt lgkmcnt(0)")
D0, G0 = WK, WK + 4
for t in range(16):
    c_d = "0" if t == 0 else vq(D0)
    c_g = "0" if t == 0 else vq(G0)
    A(f"v_mfma_f32_16x16x32_bf16 {vq(D0)}, {vq(KREG+4*t)}, {vq(VREG+4*t)}, {c_d}")
    A(f"v_mfma_f32_16x16x32_bf16 {vq(G0)}, {vq(KREG+4*t)}, {vq(KREG+4*t)}, {c_g}")
S1, S2, QV, CS, CT = WK + 8, WK + 12, WK + 16, WK + 20, WK + 21
for r in range(4):
    A(f"v_mov_b32_dpp v{S1+r}, v{G0+r} row_newbcast:8 row_mask:0xf bank_mask:0xf")
for r in range(4):
    A(f"v_mov_b32_dpp v{S2+r}, v{G0+r} row_newbcast:{r} row_mask:0xd bank_mask:0xf")
    A(f"v_mov_b32_dpp v{S2+r}, v{G0+r} row_newbcast:{4+r} row_mask:0x2 bank_mask:0xf")
A(f"v_mov_b32 v{CT}, v{D0}")
A(f"v_mov_b32 v{CS}, 0")
A(f"v_permlane32_swap_b32 v{CT}, v{CS}")
for r in range(4):
    A(f"v_mul_f32 v{S1+r}, {sINV512}, v{S1+r}")
    A(f"v_mul_f32 v{S2+r}, {sINV512}, v{S2+r}")
    A(f"v_fma_f32 v{S2+r}, -v{S1+r}, v{S1+r}, v{S2+r}")
    A(f"v_max_f32 v{S2+r}, 0, v{S2+r}")
    A(f"v_add_f32 v{S2+r}, {sEPS}, v{S2+r}")
    A(f"v_rsq_f32 v{S2+r}, v{S2+r}")
    A(f"v_fma_f32 v{QV+r}, -v{S1+r}, v{CS}, v{D0+r}")
    A(f"v_mul_f32 v{QV+r}, v{QV+r}, v{S2+r}")
A(f"v_mov_b32 {vSENT}, -2")
for r in range(4):
    A(f"v_mov_b32_dpp v{S1+r}, v{QV+r} quad_perm:[1,0,3,2] row_mask:0xf bank_mask:0xf")
for r in range(4):
    A(f"v_cvt_pk_bf16_f32 v{QV+r}, v{QV+r}, v{S1+r}")
    sanitize(f"v{QV+r}")
A(f"v_lshrrev_b32 {vT[9]}, 1, {vI}")
A(f"v_lshlrev_b32 {vT[9]}, 2, {vT[9]}")
A(f"v_lshl_add_u32 {vT[9]}, {vSl}, 12, {vT[9]}")
A(f"s_lshl_b32 {sT0}, {sJ}, 5")
A(f"v_add_u32 {vT[9]}, {sT0}, {vT[9]}")
make_srd(S_T, P_DBG, size=256)
A(f"v_lshlrev_b32 {vT[10]}, 2, {vLANE}")
A("s_mov_b64 exec, 0xff")
A.label("L_ARR")
A(f"buffer_load_dword {vT[11]}, {vT[10]}, {srd(S_T)}, 0 offen sc1")
A(f"s_sub_u32 {sSPIN}, {sSPIN}, 1")
A("s_cbranch_scc1 L_END")
A("s_waitcnt vmcnt(0)")
A(f"v_and_b32 {vT[8]}, 63, {vT[11]}")
A(f"v_cmp_ne_u32 vcc, 32, {vT[8]}")
A("s_cbranch_vccnz L_ARR")
A("s_mov_b64 exec, -1")
A(f"v_readlane_b32 {sT0}, {vT[11]}, {sG}")
A(f"s_lshl_b32 {sT1}, {sT4}, 5")
A(f"s_cmp_eq_u32 {sT0}, {sT1}")
A(f"s_cselect_b32 {sMODE}, 1, 2")
A(f"v_mov_b32 {vT[10]}, {FLAG}")
A(f"v_mov_b32 {vT[11]}, {sMODE}")
A(f"ds_write_b32 {vT[10]}, {vT[11]}")
ts(2)
A("s_mov_b32 exec_lo, 0x55555555")
A("s_mov_b32 exec_hi, 0")
lf = A.newlabel("L_q1f"); le = A.newlabel("L_q1e")
A(f"s_cmp_eq_u32 {sMODE}, 1")
A(f"s_cbranch_scc1 {lf}")
for r in range(4):
    A(f"buffer_store_dword v{QV+r}, {vT[9]}, {srd(S_G)}, 0 offen offset:{r*1024} sc1")
A(f"s_branch {le}")
A.label(lf)
for r in range(4):
    A(f"buffer_store_dword v{QV+r}, {vT[9]}, {srd(S_G)}, 0 offen offset:{r*1024}")
A.label(le)
A("s_mov_b64 exec, -1")
A(f"s_lshl_b32 {sT0}, {sB}, 10")
A(f"v_lshl_add_u32 {vT[10]}, {vLANE}, 4, {sT0}")
poll(lambda: A(f"buffer_load_dwordx4 {vq(WK)}, {vT[10]}, {srd(S_G)}, 0 offen sc1"), range(WK, WK + 4))
A(f"v_mul_u32_u24 {vT[10]}, 272, {vSl}")
A(f"v_lshl_add_u32 {vT[10]}, {vI}, 4, {vT[10]}")
A(f"v_add_u32 {vT[10]}, {QBUF}, {vT[10]}")
A(f"ds_write_b128 {vT[10]}, {vq(WK)}")
A(f"v_and_b32 {vXO1}, 0xffff0000, {vXO0}")
A(f"v_lshlrev_b32 {vXO0}, 16, {vXO0}")
ts(3)

A.label("L_STREAM")
lnp = A.newlabel("L_nopf")
A(f"s_cmp_eq_u32 {sW}, 1")
A(f"s_cbranch_scc0 {lnp}")
A("s_getpc_b64 s[84:85]")
A(f"v_lshlrev_b32 {vT[8]}, 6, {vLANE}")
for i in range(2):
    A(f"global_load_dword v{DUMMY}, {vT[8]}, s[84:85]")
    A("s_add_u32 s84, s84, 4096")
    A("s_addc_u32 s85, s85, 0")
A.label(lnp)


def kv_dma(srdn, voffs, T):
    A(f"s_add_u32 m0, {sT5}, {T*4096}")
    for q in range(4):
        A(f"buffer_load_dwordx4 {voffs[q % len(voffs)]}, {srd(srdn)}, s{sTILE[T]} offen offset:{q*1024} nt lds")


for T in range(4):
    kv_dma(S_K, vKq, T)
vI, vSl = vT[3], vT[4]
A(f"v_and_b32 {vI}, 15, {vLANE}")
A(f"v_lshrrev_b32 {vSl}, 4, {vLANE}")
A(f"s_mov_b32 {sC1}, 0x3e0293ee")
A(f"s_mov_b32 {sINV512}, 0x3b000000")
A(f"s_mov_b32 {sEPS}, 0x3727c5ac")
A(f"s_mov_b32 {sNLOG2E}, 0xbfb8aa3b")
A(f"v_mov_b32 {vSENT}, -2")
for i in range(4):
    A(f"v_mov_b32 v{ONES+i}, 0x3f803f80")
A(f"v_xor_b32 {vT[5]}, {vI}, {vSl}")
A(f"v_lshlrev_b32 {vT[5]}, 4, {vT[5]}")
A(f"v_lshl_add_u32 {vT[5]}, {vI}, 8, {vT[5]}")
A(f"v_add_u32 {vKr[0]}, {sT5}, {vT[5]}")
for c in range(1, 4):
    A(f"v_xor_b32 {vKr[c]}, {c << 6}, {vKr[0]}")
A(f"v_lshrrev_b32 {vT[5]}, 2, {vI}")
A(f"v_lshl_add_u32 {vT[5]}, {vSl}, 2, {vT[5]}")
A(f"v_and_b32 {vT[6]}, 7, {vT[5]}")
A(f"v_lshlrev_b32 {vT[6]}, 5, {vT[6]}")
A(f"v_lshl_add_u32 {vT[6]}, {vT[5]}, 8, {vT[6]}")
A(f"v_and_b32 {vT[7]}, 3, {vLANE}")
A(f"v_lshl_add_u32 {vT[6]}, {vT[7]}, 3, {vT[6]}")
A(f"v_add_u32 {vVr0}, {sT5}, {vT[6]}")
A(f"v_and_b32 {vT[7]}, 3, {vLANE}")
A(f"s_lshl_b32 {sT0}, {sB}, 10")
A(f"v_lshlrev_b32 {vT[5]}, 8, {vT[7]}")
A(f"v_lshl_add_u32 {vT[5]}, {vSl}, 4, {vT[5]}")
A(f"v_add_u32 {vQOFF}, {sT0}, {vT[5]}")
A(f"v_lshlrev_b32 {vT[5]}, 9, {vT[7]}")
A(f"v_lshl_add_u32 {vT[5]}, {vSl}, 4, {vT[5]}")
A(f"s_add_u32 {sT0}, {sT5}, {W_OP}")
A(f"v_add_u32 {vOPW}, {sT0}, {vT[5]}")
A(f"s_lshr_b32 {sT0}, {sW}, 1")
A(f"s_lshl_b32 {sT1}, {sT0}, 9")
A(f"s_and_b32 {sT2}, {sW}, 1")
A(f"s_lshl_b32 {sT2}, {sT2}, 8")
A(f"s_add_u32 {sT1}, {sT1}, {sT2}")
A(f"s_add_u32 {sT1}, {sT1}, {W_OP}")
A(f"v_lshl_add_u32 {vOPR0}, {vLANE}, 2, {sT1}")
A(f"v_add_u32 {vOPR1}, 0x10000, {vOPR0}")
A(f"s_mul_i32 {sT1}, {sJ}, {OPS}")
A(f"s_lshl_b32 {sT2}, {sW}, 8")
A(f"s_add_u32 {sT1}, {sT1}, {sT2}")
A(f"v_lshl_add_u32 {vOPS}, {vLANE}, 2, {sT1}")
A(f"s_lshl_b32 {sT1}, {sW}, 5")
A(f"s_add_u32 {sT1}, {sT1}, {STAT}")
A(f"v_lshl_add_u32 {vSTW}, {vT[7]}, 3, {sT1}")
A(f"s_lshl_b32 {sT0}, {sT0}, 3")
A(f"s_add_u32 {sT0}, {sT0}, {STAT}")
A(f"v_mov_b32 {vSTR}, {sT0}")
A(f"s_lshl_b32 {sT0}, {sCW}, 8")
A(f"v_lshlrev_b32 {vT[5]}, 10, {vI}")
A(f"v_lshl_add_u32 {vT[5]}, {vSl}, 4, {vT[5]}")
A(f"v_add_u32 {vXOFF}, {sT0}, {vT[5]}")
A(f"s_lshl_b32 {sT0}, {sCW}, 7")
A(f"v_lshlrev_b32 {vT[5]}, 9, {vI}")
A(f"v_lshl_add_u32 {vT[5]}, {vSl}, 4, {vT[5]}")
A(f"v_add_u32 {vHOFF}, {sT0}, {vT[5]}")
A(f"s_mul_i32 {sT0}, {sCW}, 3072")
A(f"s_add_u32 {sT0}, {sT0}, {PART}")
A(f"v_lshl_add_u32 {vPW}, {vLANE}, 4, {sT0}")
A(f"v_lshrrev_b32 {vT[5]}, 2, {vI}")
A(f"v_lshl_add_u32 {vT[5]}, {vSl}, 3, {vT[5]}")
A(f"v_lshlrev_b32 {vT[5]}, 5, {vT[5]}")
A(f"v_and_b32 {vT[6]}, 3, {vLANE}")
A(f"v_lshl_add_u32 {vT[5]}, {vT[6]}, 3, {vT[5]}")
A(f"v_add_u32 {vWOWN}, {sT5}, {vT[5]}")
A(f"s_lshl_b32 {sT0}, {sCW}, 12")
A(f"s_add_u32 {sT0}, {sT0}, {WQI}")
A(f"v_add_u32 {vWQ}, {sT0}, {vT[5]}")
vBb, vNp = vT[5], vT[6]
A(f"v_lshrrev_b32 {vBb}, 3, {vLANE}")
A(f"v_and_b32 {vNp}, 7, {vLANE}")
A(f"v_lshrrev_b32 {vT[7]}, 2, {vBb}")
A(f"v_lshlrev_b32 {vT[7]}, 8, {vT[7]}")
A(f"v_and_b32 {vT[8]}, 3, {vBb}")
A(f"v_lshl_add_u32 {vT[7]}, {vT[8]}, 2, {vT[7]}")
A(f"v_add_u32 {vT[7]}, {PART}, {vT[7]}")
A(f"v_lshl_add_u32 {vFA}, {vNp}, 5, {vT[7]}")
A(f"v_add_u32 {vFS1}, {2048 + 8*16}, {vT[7]}")
A(f"v_lshl_add_u32 {vFS2}, {vBb}, 4, {vT[7]}")
A(f"v_add_u32 {vFS2}, 2048, {vFS2}")
A(f"v_lshlrev_b32 {vT[8]}, 5, {vNp}")
A(f"v_add_u32 {vFC}, {PART + 32*16}, {vT[8]}")
A(f"s_lshl_b32 {sT0}, {sG}, 5")
A(f"s_add_u32 {sT0}, {sT0}, {sJ}")
A(f"s_mul_i32 {sT0}, {sT0}, 14")
A(f"s_and_b32 {sDELTA}, {sT0}, 15")
A(f"s_lshr_b32 {sDELTA}, {sDELTA}, 1")
A(f"v_add_u32 {vT[8]}, {sDELTA}, {vNp}")
A(f"v_lshl_add_u32 {vFG}, {vT[8]}, 4, {vT[7]}")
A(f"v_lshlrev_b32 {vT[8]}, 4, {vT[8]}")
A(f"v_add_u32 {vFCG}, {PART + 32*16}, {vT[8]}")
A(f"s_lshl_b32 {sT0}, {sG}, 9")
A(f"v_lshlrev_b32 {vALD}, 3, {vLANE}")
A(f"v_add_u32 {vAST}, {sT0}, {vALD}")
A(f"v_lshlrev_b32 {vT[8]}, 2, {vNp}")
A(f"v_lshl_add_u32 {vT[8]}, {vBb}, 10, {vT[8]}")
A(f"s_lshl_b32 {sT0}, {sJ}, 5")
A(f"v_add_u32 {vXST}, {sT0}, {vT[8]}")
A(f"v_lshrrev_b32 {vT[8]}, 1, {vNp}")
A(f"v_lshlrev_b32 {vT[8]}, 2, {vT[8]}")
A(f"v_lshl_add_u32 {vT[8]}, {vBb}, 9, {vT[8]}")
A(f"s_lshl_b32 {sT0}, {sJ}, 4")
A(f"v_add_u32 {vHST}, {sT0}, {vT[8]}")
A(f"s_mul_i32 {sT0}, {sB}, {4*OPS}")
A(f"s_lshl_b32 {sT1}, {sS}, 9")
A(f"s_add_u32 {sT1}, {sT1}, {sT0}")
A(f"v_add_u32 {vH1a}, {sT1}, {vALD}")
A(f"v_add_u32 {vH1b}, {2*OPS}, {vH1a}")
A(f"s_lshl_b32 {sT1}, {sS}, 3")
A(f"s_add_u32 {sT1}, {sT1}, {sT0}")
A(f"s_add_u32 {sT1}, {sT1}, 2048")
A(f"v_mov_b32 {vH1sa}, {sT1}")
A(f"v_add_u32 {vH1sb}, {2*OPS}, {vH1sa}")
A(f"s_lshl_b32 {sT0}, {sB}, 10")
A(f"s_lshl_b32 {sT1}, {sS}, 8")
A(f"s_add_u32 {sT0}, {sT0}, {sT1}")
A(f"v_lshl_add_u32 {vONS}, {vLANE}, 2, {sT0}")

for T in range(4):
    A("s_waitcnt vmcnt(12)")
    for c in range(4):
        A(f"ds_read_b128 {vq(KREG + (4*T+c)*4)}, {vKr[c]} offset:{T*4096}")
    A("s_waitcnt lgkmcnt(0)")
    kv_dma(S_V, vVq, T)
ts(4)
if PREWARM:
    lnw = A.newlabel("L_npw")
    A(f"s_cmp_eq_u32 {sW}, 0")
    A(f"s_cbranch_scc1 {lnw}")
    A(f"s_cmp_gt_u32 {sW}, 3")
    A(f"s_cbranch_scc1 {lnw}")
    A(f"v_mov_b32 {vT[5]}, {FLAG}")
    lfw = A.newlabel("L_fw")
    A.label(lfw)
    A(f"ds_read_b32 {vT[6]}, {vT[5]}")
    A(f"s_sub_u32 {sSPIN}, {sSPIN}, 1")
    A("s_cbranch_scc1 L_END")
    A("s_waitcnt lgkmcnt(0)")
    A(f"v_cmp_eq_u32 vcc, 0, {vT[6]}")
    A(f"s_cbranch_vccnz {lfw}")
    A(f"s_mul_i32 {sT0}, {sJ}, 7168")
    A(f"s_sub_u32 {sT1}, {sW}, 1")
    A(f"s_mul_i32 {sT1}, {sT1}, 3072")
    A(f"s_add_u32 {sT0}, {sT0}, {sT1}")
    A(f"v_lshl_add_u32 {vT[5]}, {vLANE}, 4, {sT0}")
    for i in range(3):
        A(f"buffer_load_dwordx4 {vq(DUMMY)}, {vT[5]}, {srd(S_G)}, 0 offen offset:{i*1024} sc1")
    A.label(lnw)
A("s_waitcnt lgkmcnt(0)")
A("s_barrier")
A(f"v_mov_b32 {vT[5]}, {FLAG}")
A(f"ds_read_b32 {vT[6]}, {vT[5]}")
A(f"v_and_b32 {vT[7]}, 3, {vLANE}")
A(f"v_mul_u32_u24 {vT[7]}, 272, {vT[7]}")
A(f"v_lshrrev_b32 {vT[8]}, 4, {vLANE}")
A(f"v_lshl_add_u32 {vT[7]}, {vT[8]}, 4, {vT[7]}")
A(f"v_add_u32 {vT[7]}, {QBUF}, {vT[7]}")
QOP = WK
for c in range(4):
    A(f"ds_read_b128 {vq(QOP+4*c)}, {vT[7]} offset:{c*64}")
A("s_waitcnt lgkmcnt(0)")
A(f"v_readfirstlane_b32 {sMODE}, {vT[6]}")
A(f"s_mov_b32 {sL}, 0")
ts(5)
A("s_branch L_ATT")

XR = WK
WA = WK + 16
WB = WK + 32
AC0, AC1, AC2 = WK + 48, WK + 52, WK + 56


def init_ones(nq):
    A(f"s_mov_b64 exec, {M_NX}")
    for i in range(4 * nq):
        A(f"v_mov_b32 v{XR+i}, v{ONES}")
    A("s_mov_b64 exec, -1")


def wread(base_reg, addr, off, nsteps):
    for t in range(nsteps):
        A(f"ds_read_b64_tr_b16 v[{base_reg+4*t}:{base_reg+4*t+1}], {addr} offset:{off + t*1024}")
        A(f"ds_read_b64_tr_b16 v[{base_reg+4*t+2}:{base_reg+4*t+3}], {addr} offset:{off + t*1024 + 128}")


def xpoll(voff, soff, nq):
    def issue():
        A(f"s_mov_b64 exec, {M_X}")
        for i in range(nq):
            A(f"buffer_load_dwordx4 {vq(XR+4*i)}, {voff}, {srd(S_G)}, {soff} offen offset:{i*64} sc1")
        A("s_mov_b64 exec, -1")
    poll(issue, range(XR, XR + 4 * nq))


def chain(acc, wreg, n):
    for i in range(n):
        c = "0" if i == 0 else vq(acc)
        A(f"v_mfma_f32_16x16x32_bf16 {vq(acc)}, {vq(XR+4*i)}, {vq(wreg+4*i)}, {c}")


def gram(acc, n):
    for i in range(n):
        c = "0" if i == 0 else vq(acc)
        A(f"v_mfma_f32_16x16x32_bf16 {vq(acc)}, {vq(XR+4*i)}, {vq(XR+4*i)}, {c}")


def rd4(dst, addr, off256):
    A(f"ds_read2st64_b32 v[{dst}:{dst+1}], {addr} offset0:{off256} offset1:{off256+12}")
    A(f"ds_read2st64_b32 v[{dst+2}:{dst+3}], {addr} offset0:{off256+24} offset1:{off256+36}")


def sum4(dst, src):
    A(f"v_add_f32 v{src}, v{src}, v{src+1}")
    A(f"v_add_f32 v{src+2}, v{src+2}, v{src+3}")
    A(f"v_add_f32 {dst}, v{src}, v{src+2}")


def ln_stats(s1, s2):
    A(f"v_mul_f32 {s1}, {sINV512}, {s1}")
    A(f"v_mul_f32 {s2}, {sINV512}, {s2}")
    A(f"v_fma_f32 {s2}, -{s1}, {s1}, {s2}")
    A(f"v_max_f32 {s2}, 0, {s2}")
    A(f"v_add_f32 {s2}, {sEPS}, {s2}")
    A(f"v_rsq_f32 {s2}, {s2}")


def role_compute(lskip):
    A(f"s_cmp_lt_u32 {sW}, 4")
    A(f"s_cbranch_scc1 {lskip}")


def role_w0(lskip):
    A(f"s_cmp_eq_u32 {sW}, 0")
    A(f"s_cbranch_scc0 {lskip}")


def finalize_partial_and_ar(soff_ar, tsb):
    R = WK
    A(f"v_add_u32 {vT[1]}, 16, {vFA}")
    rd4(R, vFA, 0)
    rd4(R + 4, vT[1], 0)
    A("s_waitcnt lgkmcnt(0)")
    sum4(f"v{R+8}", R)
    sum4(f"v{R+9}", R + 4)
    sanitize(f"v{R+8}")
    sanitize(f"v{R+9}")
    A(f"buffer_store_dwordx2 v[{R+8}:{R+9}], {vAST}, {srd(S_AR)}, {soff_ar} offen sc1")
    ts(tsb)

    def issue():
        for gg in range(8):
            A(f"buffer_load_dwordx2 v[{R+10+2*gg}:{R+11+2*gg}], {vALD}, {srd(S_AR)}, {soff_ar} offen offset:{gg*512} sc1")
    poll(issue, range(R + 10, R + 26), pre_sleep=DLY_AR)
    B = R + 10
    for k in (0, 1):
        A(f"v_add_f32 v{B+k}, v{B+k}, v{B+2+k}")
        A(f"v_add_f32 v{B+4+k}, v{B+4+k}, v{B+6+k}")
        A(f"v_add_f32 v{B+8+k}, v{B+8+k}, v{B+10+k}")
        A(f"v_add_f32 v{B+12+k}, v{B+12+k}, v{B+14+k}")
    for k in (0, 1):
        A(f"v_add_f32 v{B+k}, v{B+k}, v{B+4+k}")
        A(f"v_add_f32 v{B+8+k}, v{B+8+k}, v{B+12+k}")
    for k in (0, 1):
        A(f"v_add_f32 v{B+k}, v{B+k}, v{B+8+k}")
    A(f"v_cvt_pk_bf16_f32 {vT[1]}, v{B}, v{B+1}")
    A(f"v_lshlrev_b32 v{B}, 16, {vT[1]}")
    A(f"v_and_b32 v{B+1}, 0xffff0000, {vT[1]}")
    A(f"v_add_f32 v{B}, v{B}, {vXO0}")
    A(f"v_add_f32 v{B+1}, v{B+1}, {vXO1}")
    A(f"v_cvt_pk_bf16_f32 {vT[1]}, v{B}, v{B+1}")
    A(f"v_lshlrev_b32 {vXO0}, 16, {vT[1]}")
    A(f"v_and_b32 {vXO1}, 0xffff0000, {vT[1]}")
    sanitize(vT[1])


A.label("L_LAYER")
lq = A.newlabel("L_q_nc")
role_compute(lq)
init_ones(4)
wread(WA, vWQ, 0, 4)
xpoll(vXOFF, sOXA, 4)
A("s_waitcnt lgkmcnt(0)")
ts(20)
chain(AC0, WA, 4)
gram(AC2, 4)
A(f"ds_write_b128 {vPW}, {vq(AC0)}")
A(f"ds_write_b128 {vPW}, {vq(AC2)} offset:2048")
A("s_waitcnt lgkmcnt(0)")
A.label(lq)
A("s_barrier")
lq2 = A.newlabel("L_q_nf")
role_w0(lq2)
R = WK
A(f"v_add_u32 {vT[1]}, 16, {vFA}")
A(f"v_add_u32 {vT[2]}, 16, {vFC}")
rd4(R, vFA, 0)
rd4(R + 4, vT[1], 0)
rd4(R + 8, vFC, 0)
rd4(R + 12, vT[2], 0)
rd4(R + 16, vFS1, 0)
rd4(R + 20, vFS2, 0)
A("s_waitcnt lgkmcnt(0)")
sum4(f"v{R+24}", R + 16)
sum4(f"v{R+25}", R + 20)
ln_stats(f"v{R+24}", f"v{R+25}")
sum4(f"v{R+26}", R)
sum4(f"v{R+27}", R + 4)
sum4(f"v{R+28}", R + 8)
sum4(f"v{R+29}", R + 12)
A(f"v_fma_f32 v{R+26}, -v{R+24}, v{R+28}, v{R+26}")
A(f"v_fma_f32 v{R+27}, -v{R+24}, v{R+29}, v{R+27}")
A(f"v_mul_f32 v{R+26}, v{R+26}, v{R+25}")
A(f"v_mul_f32 v{R+27}, v{R+27}, v{R+25}")
A(f"v_cvt_pk_bf16_f32 {vT[1]}, v{R+26}, v{R+27}")
sanitize(vT[1])
group_store(f"buffer_store_dword {vT[1]}, {vXST}, {srd(S_G)}, {sOQ} offen")
ts(21)
A.label(lq2)


def qissue():
    for c in range(4):
        A(f"buffer_load_dwordx4 {vq(QOP+4*c)}, {vQOFF}, {srd(S_G)}, {sOQ} offen offset:{c*64} sc1")


poll(qissue, range(QOP, QOP + 16))
ts(22)

A.label("L_ATT")
A(f"s_lshl_b32 {sT0}, {sL}, 13")
A(f"s_add_u32 {sOON}, {sT0}, {hex(G_ON)}")
A(f"s_lshl_b32 {sT1}, {sL}, 14")
A(f"s_add_u32 {sOXO1}, {sT1}, {hex(G_XA)}")
A(f"s_mul_i32 {sT1}, {sL}, {32*OPS}")
A(f"s_add_u32 {sOOP}, {sT1}, {hex(G_OP)}")
A(f"s_lshl_b32 {sT1}, {sL}, 12")
A(f"s_add_u32 {sOH}, {sT1}, {hex(G_H)}")
A(f"s_lshl_b32 {sOAR1}, {sL}, 18")
A(f"s_add_u32 {sOAR2}, {sOAR1}, 0x20000")
SC = WK + 36
PQ = WK + 52
OA = WK
LA = WK + 32
for T in range(4):
    for c in range(4):
        cc = "0" if c == 0 else vq(SC + 4 * T)
        A(f"v_mfma_f32_16x16x32_bf16 {vq(SC+4*T)}, {vq(KREG+(4*T+c)*4)}, {vq(QOP+4*c)}, {cc}")
m0, m1 = vT[0], vT[1]
A(f"v_max3_f32 {m0}, v{SC}, v{SC+1}, v{SC+2}")
A(f"v_max3_f32 {m1}, v{SC+8}, v{SC+9}, v{SC+10}")
A(f"v_max3_f32 {m0}, {m0}, v{SC+3}, v{SC+4}")
A(f"v_max3_f32 {m1}, {m1}, v{SC+11}, v{SC+12}")
A(f"v_max3_f32 {m0}, {m0}, v{SC+5}, v{SC+6}")
A(f"v_max3_f32 {m1}, {m1}, v{SC+13}, v{SC+14}")
A(f"v_max3_f32 {m0}, {m0}, v{SC+7}, v{SC+15}")
A(f"v_max_f32 {m0}, {m0}, {m1}")
A(f"v_mov_b32 {m1}, {m0}")
A(f"v_permlane32_swap_b32 {m0}, {m1}")
A(f"v_max_f32 {m0}, {m0}, {m1}")
A(f"v_mov_b32 {m1}, {m0}")
A(f"v_permlane16_swap_b32 {m0}, {m1}")
A(f"v_max_f32 {m0}, {m0}, {m1}")
MP = vT[2]
A(f"v_mul_f32 {MP}, {sC1}, {m0}")
for i in range(16):
    A(f"v_fma_f32 v{SC+i}, v{SC+i}, {sC1}, -{MP}")
for i in range(16):
    A(f"v_exp_f32 v{SC+i}, v{SC+i}")
for u in range(2):
    for k in range(4):
        A(f"v_cvt_pk_bf16_f32 v{PQ+4*u+k}, v{SC+8*u+2*k}, v{SC+8*u+2*k+1}")
ts(6)


def v_stage(u):
    l = A.newlabel("L_vs")
    A(f"s_cmp_eq_u32 {sL}, 0")
    A(f"s_cbranch_scc0 {l}")
    if u == 0:
        A("s_waitcnt vmcnt(8)")
    else:
        lc = A.newlabel("L_vc"); lc2 = A.newlabel("L_vc2")
        A(f"s_cmp_lt_u32 {sW}, 4")
        A(f"s_cbranch_scc1 {lc}")
        A("s_waitcnt vmcnt(4)")
        A(f"s_branch {lc2}")
        A.label(lc)
        A("s_waitcnt vmcnt(0)")
        A.label(lc2)
    for dt in range(8):
        a = vT[4 + (dt & 1)]
        A(f"v_xor_b32 {a}, {dt << 5}, {vVr0}")
        r = VREG + (8 * u + dt) * 4
        A(f"ds_read_b64_tr_b16 v[{r}:{r+1}], {a} offset:{(2*u)*4096}")
        A(f"ds_read_b64_tr_b16 v[{r+2}:{r+3}], {a} offset:{(2*u+1)*4096}")
    A("s_waitcnt lgkmcnt(0)")
    if u == 0:
        ln = A.newlabel("L_nwo")
        A(f"s_cmp_lt_u32 {sW}, 4")
        A(f"s_cbranch_scc1 {ln}")
        A(f"s_lshl_b32 {sT0}, {sG}, 19")
        A(f"s_lshl_b32 {sT1}, {sJ}, 5")
        A(f"s_add_u32 {sT0}, {sT0}, {sT1}")
        A(f"s_sub_u32 {sT1}, 0x400000, {sT0}")
        make_srd(S_T, P_WO, off_sgpr=sT0, size=sT1)
        A(f"v_lshrrev_b32 {vT[4]}, 1, {vLANE}")
        A(f"v_and_b32 {vT[5]}, 1, {vLANE}")
        A(f"v_lshlrev_b32 {vT[5]}, 4, {vT[5]}")
        A(f"v_lshl_add_u32 {vT[4]}, {vT[4]}, 10, {vT[5]}")
        A(f"s_lshl_b32 {sT0}, {sCW}, 17")
        for i in range(4):
            A(f"s_add_u32 m0, {sT5}, {W_WO + i*1024}")
            A(f"s_add_u32 {sT1}, {sT0}, {i*32*1024}")
            A(f"buffer_load_dwordx4 {vT[4]}, {srd(S_T)}, {sT1} offen lds")
        A.label(ln)
    A.label(l)


for u in range(2):
    v_stage(u)
    for dt in range(8):
        cc = "0" if u == 0 else vq(OA + 4 * dt)
        A(f"v_mfma_f32_16x16x32_bf16 {vq(OA+4*dt)}, {vq(VREG+(8*u+dt)*4)}, {vq(PQ+4*u)}, {cc}")
    cc = "0" if u == 0 else vq(LA)
    A(f"v_mfma_f32_16x16x32_bf16 {vq(LA)}, {vq(ONES)}, {vq(PQ+4*u)}, {cc}")
ts(7)
for dt in range(8):
    cg = dt & 3
    mask = 0x000F000F << (4 * cg)
    A(f"s_mov_b32 exec_lo, {hex(mask)}")
    A(f"s_mov_b32 exec_hi, {hex(mask)}")
    A(f"ds_write_b128 {vOPW}, {vq(OA+4*dt)} offset:{dt*64}")
A("s_mov_b64 exec, 0xf")
A(f"v_mov_b32 {vT[4]}, {MP}")
A(f"v_mov_b32 {vT[5]}, v{LA}")
A(f"ds_write_b64 {vSTW}, v[48:49]")
A("s_mov_b64 exec, -1")
A("s_waitcnt lgkmcnt(0)")
A("s_barrier")
R = WK
for w in range(8):
    a = vOPR0 if w < 4 else vOPR1
    A(f"ds_read_b32 v{R+w}, {a} offset:{(w & 3)*16384}")
for w in range(8):
    A(f"ds_read_b64 v[{R+8+2*w}:{R+9+2*w}], {vSTR} offset:{w*32}")
A("s_waitcnt lgkmcnt(0)")
MM = vT[0]
A(f"v_max3_f32 {MM}, v{R+8}, v{R+10}, v{R+12}")
A(f"v_max3_f32 {MM}, {MM}, v{R+14}, v{R+16}")
A(f"v_max3_f32 {MM}, {MM}, v{R+18}, v{R+20}")
A(f"v_max_f32 {MM}, {MM}, v{R+22}")
for w in range(8):
    A(f"v_sub_f32 v{R+8+2*w}, v{R+8+2*w}, {MM}")
for w in range(8):
    A(f"v_exp_f32 v{R+8+2*w}, v{R+8+2*w}")
OO, LL = vT[4], vT[5]
A(f"v_mul_f32 {OO}, v{R}, v{R+8}")
A(f"v_mul_f32 {LL}, v{R+9}, v{R+8}")
for w in range(1, 8):
    A(f"v_fmac_f32 {OO}, v{R+w}, v{R+8+2*w}")
    A(f"v_fmac_f32 {LL}, v{R+9+2*w}, v{R+8+2*w}")
sanitize(OO)
group_store(f"buffer_store_dword {OO}, {vOPS}, {srd(S_G)}, {sOOP} offen")
lst = A.newlabel("L_nst")
A(f"s_and_b32 {sT0}, {sW}, 1")
A(f"s_cmp_eq_u32 {sT0}, 0")
A(f"s_cbranch_scc0 {lst}")
A(f"v_min_u32 {vT[6]}, {vSENT}, {MM}")
A(f"v_min_u32 {vT[7]}, {vSENT}, {LL}")
A(f"s_mul_i32 {sT0}, {sJ}, {OPS}")
A(f"s_lshl_b32 {sT1}, {sW}, 2")
A(f"s_add_u32 {sT0}, {sT0}, {sT1}")
A(f"s_add_u32 {sT0}, {sT0}, 2048")
A(f"v_mov_b32 {vT[8]}, {sT0}")
A("s_mov_b64 exec, 1")
group_store(f"buffer_store_dwordx2 v[50:51], {vT[8]}, {srd(S_G)}, {sOOP} offen")
A("s_mov_b64 exec, -1")
A.label(lst)
ts(8)
if STOP == "att":
    A("s_branch L_FIN")

lh1 = A.newlabel("L_nh1")
role_w0(lh1)
R = WK


def h1issue():
    A(f"buffer_load_dwordx2 v[{R}:{R+1}], {vH1a}, {srd(S_G)}, {sOOP} offen sc1")
    A(f"buffer_load_dwordx2 v[{R+2}:{R+3}], {vH1a}, {srd(S_G)}, {sOOP} offen offset:{OPS} sc1")
    A(f"buffer_load_dwordx2 v[{R+4}:{R+5}], {vH1b}, {srd(S_G)}, {sOOP} offen sc1")
    A(f"buffer_load_dwordx2 v[{R+6}:{R+7}], {vH1b}, {srd(S_G)}, {sOOP} offen offset:{OPS} sc1")
    A(f"buffer_load_dwordx2 v[{R+8}:{R+9}], {vH1sa}, {srd(S_G)}, {sOOP} offen sc1")
    A(f"buffer_load_dwordx2 v[{R+10}:{R+11}], {vH1sa}, {srd(S_G)}, {sOOP} offen offset:{OPS} sc1")
    A(f"buffer_load_dwordx2 v[{R+12}:{R+13}], {vH1sb}, {srd(S_G)}, {sOOP} offen sc1")
    A(f"buffer_load_dwordx2 v[{R+14}:{R+15}], {vH1sb}, {srd(S_G)}, {sOOP} offen offset:{OPS} sc1")


poll(h1issue, range(R, R + 16))
MM = vT[0]
A(f"v_max3_f32 {MM}, v{R+8}, v{R+10}, v{R+12}")
A(f"v_max_f32 {MM}, {MM}, v{R+14}")
for s in range(4):
    A(f"v_sub_f32 v{R+8+2*s}, v{R+8+2*s}, {MM}")
for s in range(4):
    A(f"v_exp_f32 v{R+8+2*s}, v{R+8+2*s}")
A(f"v_mul_f32 {vT[1]}, v{R+9}, v{R+8}")
A(f"v_mul_f32 {vT[2]}, v{R}, v{R+8}")
A(f"v_mul_f32 {vT[3]}, v{R+1}, v{R+8}")
for s in range(1, 4):
    A(f"v_fmac_f32 {vT[1]}, v{R+9+2*s}, v{R+8+2*s}")
    A(f"v_fmac_f32 {vT[2]}, v{R+2*s}, v{R+8+2*s}")
    A(f"v_fmac_f32 {vT[3]}, v{R+2*s+1}, v{R+8+2*s}")
A(f"v_rcp_f32 {vT[1]}, {vT[1]}")
A(f"v_mul_f32 {vT[2]}, {vT[2]}, {vT[1]}")
A(f"v_mul_f32 {vT[3]}, {vT[3]}, {vT[1]}")
A(f"v_cvt_pk_bf16_f32 {vT[2]}, {vT[2]}, {vT[3]}")
sanitize(vT[2])
group_store(f"buffer_store_dword {vT[2]}, {vONS}, {srd(S_G)}, {sOON} offen")
ts(9)
A.label(lh1)

lwo = A.newlabel("L_nwo2")
role_compute(lwo)
init_ones(4)
A("s_waitcnt vmcnt(0)")
wread(WA, vWOWN, W_WO, 4)
xpoll(vXOFF, sOON, 4)
lgu = A.newlabel("L_ngu")
A(f"s_cmp_eq_u32 {sL}, 0")
A(f"s_cbranch_scc0 {lgu}")
A(f"s_lshl_b32 {sT0}, {sG}, 5")
A(f"s_add_u32 {sT0}, {sT0}, {sJ}")
A(f"s_mul_i32 {sT0}, {sT0}, 14")
A(f"s_and_b32 {sT0}, {sT0}, 0xfffffff0")
A(f"s_sub_u32 {sT1}, {512*3584}, {sT0}")
make_srd(S_T, P_WG, off_sgpr=sT0, size=sT1)
make_srd(S_T2, P_WU, off_sgpr=sT0, size=sT1)
A(f"v_lshrrev_b32 {vT[4]}, 1, {vLANE}")
A(f"v_and_b32 {vT[5]}, 1, {vLANE}")
A(f"v_lshlrev_b32 {vT[5]}, 4, {vT[5]}")
A(f"v_mul_u32_u24 {vT[6]}, 3584, {vT[4]}")
A(f"v_add_u32 {vT[6]}, {vT[6]}, {vT[5]}")
A(f"s_mul_i32 {sT0}, {sCW}, {128*3584}")
for i in range(4):
    A(f"s_add_u32 m0, {sT5}, {W_G + i*1024}")
    A(f"s_add_u32 {sT1}, {sT0}, {i*32*3584}")
    A(f"buffer_load_dwordx4 {vT[6]}, {srd(S_T)}, {sT1} offen lds")
for i in range(4):
    A(f"s_add_u32 m0, {sT5}, {W_U + i*1024}")
    A(f"s_add_u32 {sT1}, {sT0}, {i*32*3584}")
    A(f"buffer_load_dwordx4 {vT[6]}, {srd(S_T2)}, {sT1} offen lds")
A(f"s_mul_i32 {sT0}, {sG}, {224*1024}")
A(f"s_lshl_b32 {sT1}, {sJ}, 5")
A(f"s_add_u32 {sT0}, {sT0}, {sT1}")
A(f"s_sub_u32 {sT1}, {1792*1024}, {sT0}")
make_srd(S_T, P_WD, off_sgpr=sT0, size=sT1)
A(f"v_lshrrev_b32 {vT[6]}, 3, {vT[4]}")
A(f"v_mul_u32_u24 {vT[6]}, 7, {vT[6]}")
A(f"v_and_b32 {vT[7]}, 7, {vT[4]}")
A(f"v_add_u32 {vT[6]}, {vT[6]}, {vT[7]}")
A(f"v_lshl_add_u32 {vT[6]}, {vT[6]}, 10, {vT[5]}")
A(f"v_mov_b32 {vT[8]}, 0x40000000")
A(f"v_cmp_eq_u32 vcc, 7, {vT[7]}")
A(f"v_cndmask_b32 {vT[6]}, {vT[6]}, {vT[8]}, vcc")
A(f"s_mul_i32 {sT0}, {sCW}, {56*1024}")
for i in range(2):
    A(f"s_add_u32 m0, {sT5}, {W_D + i*1024}")
    A(f"s_add_u32 {sT1}, {sT0}, {i*28*1024}")
    A(f"buffer_load_dwordx4 {vT[6]}, {srd(S_T)}, {sT1} offen lds")
A.label(lgu)
A("s_waitcnt lgkmcnt(0)")
ts(10)
chain(AC0, WA, 4)
A(f"ds_write_b128 {vPW}, {vq(AC0)}")
A("s_waitcnt lgkmcnt(0)")
A.label(lwo)
A("s_barrier")
lwf = A.newlabel("L_nwf")
role_w0(lwf)
finalize_partial_and_ar(sOAR1, 11)
group_store(f"buffer_store_dword {vT[1]}, {vXST}, {srd(S_G)}, {sOXO1} offen")
ts(12)
A.label(lwf)
if STOP == "x1":
    A("s_branch L_FIN")

lg = A.newlabel("L_ng")
role_compute(lg)
init_ones(4)
A("s_waitcnt vmcnt(0)")
wread(WA, vWOWN, W_G, 4)
wread(WB, vWOWN, W_U, 4)
xpoll(vXOFF, sOXO1, 4)
A("s_waitcnt lgkmcnt(0)")
ts(13)
chain(AC0, WA, 4)
chain(AC1, WB, 4)
gram(AC2, 4)
A(f"ds_write_b128 {vPW}, {vq(AC0)}")
A(f"ds_write_b128 {vPW}, {vq(AC1)} offset:1024")
A(f"ds_write_b128 {vPW}, {vq(AC2)} offset:2048")
A("s_waitcnt lgkmcnt(0)")
A.label(lg)
A("s_barrier")
lgf = A.newlabel("L_ngf")
role_w0(lgf)
R = WK
rd4(R, vFG, 0)
rd4(R + 4, vFG, 4)
rd4(R + 8, vFCG, 0)
rd4(R + 12, vFCG, 4)
rd4(R + 16, vFS1, 0)
rd4(R + 20, vFS2, 0)
A("s_waitcnt lgkmcnt(0)")
sum4(f"v{R+24}", R + 16)
sum4(f"v{R+25}", R + 20)
ln_stats(f"v{R+24}", f"v{R+25}")
sum4(f"v{R+26}", R)
sum4(f"v{R+27}", R + 4)
sum4(f"v{R+28}", R + 8)
sum4(f"v{R+29}", R + 12)
A(f"v_fma_f32 v{R+26}, -v{R+24}, v{R+28}, v{R+26}")
A(f"v_fma_f32 v{R+27}, -v{R+24}, v{R+29}, v{R+27}")
A(f"v_mul_f32 v{R+26}, v{R+26}, v{R+25}")
A(f"v_mul_f32 v{R+27}, v{R+27}, v{R+25}")
A(f"v_mul_f32 v{R+26}, {sNLOG2E}, v{R+26}")
A(f"v_exp_f32 v{R+26}, v{R+26}")
A(f"v_add_f32 v{R+26}, 1.0, v{R+26}")
A(f"v_rcp_f32 v{R+26}, v{R+26}")
A(f"v_mul_f32 v{R+26}, v{R+26}, v{R+27}")
A(f"v_and_b32 {vT[1]}, 7, {vLANE}")
A(f"v_cmp_eq_u32 vcc, 7, {vT[1]}")
A(f"v_mov_b32 {vT[2]}, 0")
A(f"v_cndmask_b32 v{R+26}, v{R+26}, {vT[2]}, vcc")
A(f"v_mov_b32_dpp v{R+27}, v{R+26} quad_perm:[1,0,3,2] row_mask:0xf bank_mask:0xf")
A(f"v_cvt_pk_bf16_f32 {vT[1]}, v{R+26}, v{R+27}")
sanitize(vT[1])
A("s_mov_b32 exec_lo, 0x55555555")
A("s_mov_b32 exec_hi, 0x55555555")
group_store(f"buffer_store_dword {vT[1]}, {vHST}, {srd(S_G)}, {sOH} offen")
A("s_mov_b64 exec, -1")
ts(14)
A.label(lgf)
if STOP == "h":
    A("s_branch L_FIN")

ld = A.newlabel("L_nd")
role_compute(ld)
init_ones(2)
wread(WA, vWOWN, W_D, 2)
xpoll(vHOFF, sOH, 2)
A("s_waitcnt lgkmcnt(0)")
ts(15)
chain(AC0, WA, 2)
A(f"ds_write_b128 {vPW}, {vq(AC0)}")
A("s_waitcnt lgkmcnt(0)")
A.label(ld)
A("s_barrier")
ldf = A.newlabel("L_ndf")
role_w0(ldf)
finalize_partial_and_ar(sOAR2, 16)
llast = A.newlabel("L_last"); ldf2 = A.newlabel("L_ndf2")
A(f"s_cmp_eq_u32 {sL}, 1")
A(f"s_cbranch_scc1 {llast}")
A(f"s_mov_b32 {sT0}, {hex(G_XA + 0x2000)}")
group_store(f"buffer_store_dword {vT[1]}, {vXST}, {srd(S_G)}, {sT0} offen")
A(f"s_branch {ldf2}")
A.label(llast)
make_srd(S_T, P_OUT, size=8192)
A(f"v_lshrrev_b32 {vT[2]}, 3, {vLANE}")
A(f"v_cmp_eq_u32 vcc, {sG}, {vT[2]}")
A("s_and_saveexec_b64 s[84:85], vcc")
A(f"buffer_store_dword {vT[1]}, {vXST}, {srd(S_T)}, 0 offen")
A("s_mov_b64 exec, s[84:85]")
A.label(ldf2)
ts(17)
A.label(ldf)
A(f"s_cmp_eq_u32 {sL}, 1")
A("s_cbranch_scc1 L_FIN")
if STOP == "x2":
    A("s_branch L_FIN")
A(f"s_mov_b32 {sL}, 1")
A(f"s_mov_b32 {sOXA}, {hex(G_XA + 0x2000)}")
A(f"s_mov_b32 {sOQ}, {hex(G_Q + 0x2000)}")
A("s_branch L_LAYER")

A.label("L_FIN")
if PROFILE:
    ts(30)
    make_srd(S_T, P_WS, off_imm=TS_BASE, size=0x100000)
    A(f"s_lshl_b32 {sT0}, s2, 3")
    A(f"s_add_u32 {sT0}, {sT0}, {sW}")
    A(f"s_lshl_b32 {sT0}, {sT0}, 8")
    A(f"v_lshl_add_u32 {vT[0]}, {vLANE}, 2, {sT0}")
    A(f"buffer_store_dword {vTS}, {vT[0]}, {srd(S_T)}, 0 offen")
A("s_waitcnt vmcnt(0)")
A.label("L_END")
A("s_endpgm")
A('.section .rodata,"a"')
A(".p2align 6")
A(f".amdhsa_kernel {KN}")
A("  .amdhsa_next_free_vgpr 256")
A("  .amdhsa_next_free_sgpr 96")
A("  .amdhsa_accum_offset 256")
A("  .amdhsa_group_segment_fixed_size 0")
A("  .amdhsa_kernarg_size 96")
A("  .amdhsa_user_sgpr_count 2")
A("  .amdhsa_user_sgpr_kernarg_segment_ptr 1")
A("  .amdhsa_system_sgpr_workgroup_id_x 1")
A(".end_amdhsa_kernel")

print("\n".join(A.finalize()))
```

```python
import sys
from asmlib import Asm

opts = dict(a.split("=") for a in sys.argv[1:] if "=" in a)


def opt(name, default):
    return int(opts.get(name, str(default)))


PROFILE = opt("prof", 0)
STOP = opts.get("stop", "")
DLY_AR = opt("dlyar", 4)
FORCE_SLOW = opt("slow", 0)
PREWARM = opt("prewarm", 1)
DK = opt("dk", 4)
DV = opt("dv", 5)
D0 = opt("d0", 5)
BACKOFF = opt("backoff", 0)
ARR_SLEEP = opt("arr", 8)
WNT = " nt" if opt("wnt", 0) else ""
HQ = opt("hq", 6)
HF = opt("hf", 6)
GI = opt("gi", 19)
AGAP = opt("agap", 2)
GGAP = opt("ggap", 4)
NPF = opt("npf", 3)
PFNT = " nt" if opt("pfnt", 1) else ""
PLAINCLR = opt("plainclr", 1)
KFIRST = opt("kfirst", 0)
NOWQP = opt("nowqp", 0)
NOWQF = opt("nowqf", 0)
NOCLR = opt("noclr", 0)
NOWOPF = opt("nowopf", 0)
PI = opt("pi", 8)
PFSL = opt("pfsl", 4)
WOPF = opt("wopf", 22)
SL_Q, SL_ON, SL_X, SL_H = opt("slq", 0), opt("slon", 0), opt("slx", 0), opt("slh", 0)

KN = "interleave_layers__sliding_block_cached__glu_gated_glu__decode_kernel"
A = Asm()

WBASE, WSTR = 65536, 14336
W_WO, W_G, W_U, W_D = 0, 4096, 8192, 12288
XSTG = WBASE + 4096
WQI = 122880
QBUF = 139264
STAT = 140288
FLAG = 140544
PART = 141312
LDS_TOTAL = 153600

G_Q, G_XA, G_ON, G_H, G_OP = 0x0, 0x4000, 0xA000, 0xE000, 0x10000
G_ARR, G_ARR2 = 0x3E000, 0x3E400
G_Q0 = 0x38000
OPS = 2176
G_CLR0 = 0x0
AR_BASE = 0x200000
ARR_BASE = 0x300000
TS_BASE = 0x400000

sW, sG, sJ, sB, sS = "s3", "s4", "s5", "s6", "s7"
P_X, P_K, P_V, P_WQ, P_WO, P_WG, P_WU, P_WD, P_OUT, P_DBG, P_WS = 8, 10, 12, 14, 16, 20, 22, 24, 26, 28, 30
S_K, S_V, S_G, S_AR, S_T, S_T2 = 32, 36, 40, 44, 48, 52
sMODE, sL, sSPIN, sCW = "s56", "s57", "s58", "s59"
sTILE = [60, 61, 62, 63]
M_X, M_NX = "s[64:65]", "s[66:67]"
sC1, sINV512, sEPS, sNLOG2E = "s68", "s69", "s70", "s71"
sOQ, sOXA, sOOP, sOON, sOH, sOAR1, sOAR2, sOXO1 = ("s%d" % i for i in range(72, 80))
sNONCE, sDELTA, sINC, sM0SAVE = "s80", "s81", "s82", "s83"
sT0, sT1, sT2, sT3, sT4, sSTG = ("s%d" % i for i in range(84, 90))
sTS = "s[90:91]"


def srd(n):
    return f"s[{n}:{n+3}]"


vLANE = "v1"
vXOFF, vHOFF, vQOFF, vOPW, vOPR0, vXNAT, vOPS, vPW, vWOWN, vWQ = ("v%d" % i for i in range(2, 12))
vFA, vAST, vALD, vXST, vXO0, vXO1 = ("v%d" % i for i in range(12, 18))
vH1a, vH1b, vH1sa, vH1sb, vONS = ("v%d" % i for i in range(18, 23))
vFS1, vFS2, vFC, vFG, vFCG, vHST = ("v%d" % i for i in range(23, 29))
vSTW, vSTR = "v29", "v30"
vTS = "v31"
vKq = ["v32", "v33", "v34", "v35"]
vVq = ["v36", "v37"]
vKr = ["v38", "v39", "v40", "v41"]
vVr0 = "v42"
vSENT = "v43"
vT = ["v%d" % i for i in range(44, 54)]
vQST, vX0R = "v54", "v55"
ONES = 56
DUMMY = 60
KREG, VREG = 64, 128
WK = 192


def vq(n, c=4):
    return f"v[{n}:{n+c-1}]"


def ts(idx, layer=False):
    if not PROFILE:
        return
    A("s_waitcnt lgkmcnt(0)")
    A("s_mov_b32 s93, m0")
    A("s_mov_b32 m0, s92")
    A("s_nop 3")
    A(f"v_writelane_b32 {vTS}, s90, m0")
    A("s_mov_b32 m0, s93")
    A(f"s_memrealtime {sTS}")
    if layer:
        A(f"s_lshl_b32 s92, {sL}, 5")
        A(f"s_add_u32 s92, s92, {idx}")
    else:
        A(f"s_mov_b32 s92, {idx}")


def make_srd(dst, ptr, off_sgpr=None, size=None, off_imm=None):
    if off_sgpr is not None:
        A(f"s_add_u32 s{dst}, s{ptr}, {off_sgpr}")
        A(f"s_addc_u32 s{dst+1}, s{ptr+1}, 0")
    elif off_imm is not None:
        A(f"s_add_u32 s{dst}, s{ptr}, {hex(off_imm)}")
        A(f"s_addc_u32 s{dst+1}, s{ptr+1}, 0")
    else:
        A(f"s_mov_b32 s{dst}, s{ptr}")
        A(f"s_mov_b32 s{dst+1}, s{ptr+1}")
    A(f"s_mov_b32 s{dst+2}, {hex(size) if isinstance(size, int) else size}")
    A(f"s_mov_b32 s{dst+3}, 0x20000")


def group_store(instr_plain):
    lf = A.newlabel("L_gsf")
    le = A.newlabel("L_gse")
    A(f"s_cmp_eq_u32 {sMODE}, 1")
    A(f"s_cbranch_scc1 {lf}")
    A(instr_plain + " sc1")
    A(f"s_branch {le}")
    A.label(lf)
    A(instr_plain)
    A.label(le)


def sanitize(v):
    A(f"v_min_u32 {v}, {vSENT}, {v}")


def max_tree(regs, dst):
    regs = list(regs)
    A(f"v_max3_u32 {dst}, v{regs[0]}, v{regs[1]}, v{regs[2]}")
    i = 3
    while i < len(regs):
        if i + 1 < len(regs):
            A(f"v_max3_u32 {dst}, {dst}, v{regs[i]}, v{regs[i+1]}")
            i += 2
        else:
            A(f"v_max_u32 {dst}, {dst}, v{regs[i]}")
            i += 1


def poll(issue, regs, pre_sleep=0):
    lp = A.newlabel("L_poll")
    if pre_sleep:
        A(f"s_sleep {pre_sleep}")
    A.label(lp)
    issue()
    A(f"s_sub_u32 {sSPIN}, {sSPIN}, 1")
    A("s_cbranch_scc1 L_END")
    A("s_waitcnt vmcnt(0)")
    max_tree(regs, vT[0])
    A(f"v_cmp_eq_u32 vcc, -1, {vT[0]}")
    if BACKOFF:
        lo = A.newlabel("L_pok")
        A(f"s_cbranch_vccz {lo}")
        A(f"s_sleep {BACKOFF}")
        A(f"s_branch {lp}")
        A.label(lo)
    else:
        A(f"s_cbranch_vccnz {lp}")


def lds_spin(off, val, label):
    A(f"v_mov_b32 {vT[4]}, {FLAG}")
    A.label(label)
    A(f"ds_read_b32 {vT[5]}, {vT[4]} offset:{off}")
    A(f"s_sub_u32 {sSPIN}, {sSPIN}, 1")
    A("s_cbranch_scc1 L_END")
    A("s_waitcnt lgkmcnt(0)")
    A(f"v_cmp_ne_u32 vcc, {val}, {vT[5]}")
    lo = A.newlabel("L_spin_ok")
    A(f"s_cbranch_vccz {lo}")
    A("s_sleep 1")
    A(f"s_branch {label}")
    A.label(lo)


def lds_inc(off):
    A(f"v_mov_b32 {vT[4]}, {FLAG}")
    A(f"v_mov_b32 {vT[5]}, 1")
    A("s_mov_b64 exec, 1")
    A(f"ds_add_u32 {vT[4]}, {vT[5]} offset:{off}")
    A("s_mov_b64 exec, -1")


def role_compute(lskip):
    A(f"s_cmp_lt_u32 {sW}, 4")
    A(f"s_cbranch_scc1 {lskip}")


def role_w0(lskip):
    A(f"s_cmp_eq_u32 {sW}, 0")
    A(f"s_cbranch_scc0 {lskip}")


XR = WK
WA = WK + 16
WB = WK + 32
AC0, AC1, AC2 = WK + 48, WK + 52, WK + 56


def init_ones(nq):
    A(f"s_mov_b64 exec, {M_NX}")
    for i in range(4 * nq):
        A(f"v_mov_b32 v{XR+i}, v{ONES}")
    A("s_mov_b64 exec, -1")


def wread(base_reg, addr, off, nsteps):
    for t in range(nsteps):
        A(f"ds_read_b64_tr_b16 v[{base_reg+4*t}:{base_reg+4*t+1}], {addr} offset:{off + t*1024}")
        A(f"ds_read_b64_tr_b16 v[{base_reg+4*t+2}:{base_reg+4*t+3}], {addr} offset:{off + t*1024 + 128}")


def xpoll(voff, soff, nq, pre_sleep=0):
    def issue():
        A(f"s_mov_b64 exec, {M_X}")
        for i in range(nq):
            A(f"buffer_load_dwordx4 {vq(XR+4*i)}, {voff}, {srd(S_G)}, {soff} offen offset:{i*512} sc1")
        A("s_mov_b64 exec, -1")
    poll(issue, range(XR, XR + 4 * nq), pre_sleep)


def chain(acc, wreg, n):
    for i in range(n):
        c = "0" if i == 0 else vq(acc)
        A(f"v_mfma_f32_16x16x32_bf16 {vq(acc)}, {vq(XR+4*i)}, {vq(wreg+4*i)}, {c}")


def gram(acc, n):
    for i in range(n):
        c = "0" if i == 0 else vq(acc)
        A(f"v_mfma_f32_16x16x32_bf16 {vq(acc)}, {vq(XR+4*i)}, {vq(XR+4*i)}, {c}")


def rd4(dst, addr, off256):
    A(f"ds_read2st64_b32 v[{dst}:{dst+1}], {addr} offset0:{off256} offset1:{off256+12}")
    A(f"ds_read2st64_b32 v[{dst+2}:{dst+3}], {addr} offset0:{off256+24} offset1:{off256+36}")


def sum4(dst, src):
    A(f"v_add_f32 v{src}, v{src}, v{src+1}")
    A(f"v_add_f32 v{src+2}, v{src+2}, v{src+3}")
    A(f"v_add_f32 {dst}, v{src}, v{src+2}")


def ln_stats(s1, s2):
    A(f"v_mul_f32 {s1}, {sINV512}, {s1}")
    A(f"v_mul_f32 {s2}, {sINV512}, {s2}")
    A(f"v_fma_f32 {s2}, -{s1}, {s1}, {s2}")
    A(f"v_max_f32 {s2}, 0, {s2}")
    A(f"v_add_f32 {s2}, {sEPS}, {s2}")
    A(f"v_rsq_f32 {s2}, {s2}")


def q_partial_tail():
    chain(AC0, WA, 4)
    gram(AC2, 4)
    A(f"ds_write_b128 {vPW}, {vq(AC0)}")
    A(f"ds_write_b128 {vPW}, {vq(AC2)} offset:2048")
    A("s_waitcnt lgkmcnt(0)")


def q_finalize():
    R = WK
    A(f"v_add_u32 {vT[1]}, 16, {vFA}")
    A(f"v_add_u32 {vT[2]}, 16, {vFC}")
    rd4(R + 16, vFS1, 0)
    rd4(R + 20, vFS2, 0)
    rd4(R, vFA, 0)
    rd4(R + 4, vT[1], 0)
    rd4(R + 8, vFC, 0)
    rd4(R + 12, vT[2], 0)
    A("s_waitcnt lgkmcnt(8)")
    sum4(f"v{R+24}", R + 16)
    sum4(f"v{R+25}", R + 20)
    ln_stats(f"v{R+24}", f"v{R+25}")
    A("s_waitcnt lgkmcnt(0)")
    sum4(f"v{R+26}", R)
    sum4(f"v{R+27}", R + 4)
    sum4(f"v{R+28}", R + 8)
    sum4(f"v{R+29}", R + 12)
    A(f"v_fma_f32 v{R+26}, -v{R+24}, v{R+28}, v{R+26}")
    A(f"v_fma_f32 v{R+27}, -v{R+24}, v{R+29}, v{R+27}")
    A(f"v_mul_f32 v{R+26}, v{R+26}, v{R+25}")
    A(f"v_mul_f32 v{R+27}, v{R+27}, v{R+25}")
    A(f"v_cvt_pk_bf16_f32 {vT[1]}, v{R+26}, v{R+27}")


A(f"; @launch grid=(256,1,1) block=(512,1,1) lds={LDS_TOTAL}")
A('.amdgcn_target "amdgcn-amd-amdhsa--gfx950"')
A(".text")
A(f".globl {KN}")
A(".p2align 8")
A(f".type {KN},@function")
A(f"{KN}:")
A("s_cmp_ge_u32 s2, 256")
A("s_cbranch_scc1 L_END")
A("s_load_dwordx16 s[8:23], s[0:1], 0")
A("s_load_dwordx8 s[24:31], s[0:1], 64")
A("s_memrealtime s[94:95]")
A(f"v_and_b32 {vLANE}, 63, v0")
A(f"v_lshrrev_b32 {vT[0]}, 6, v0")
A(f"v_readfirstlane_b32 {sW}, {vT[0]}")
A(f"s_and_b32 {sG}, s2, 7")
A(f"s_lshr_b32 {sJ}, s2, 3")
A(f"s_lshr_b32 {sB}, {sJ}, 2")
A(f"s_and_b32 {sS}, {sJ}, 3")
if PROFILE:
    A(f"v_mov_b32 {vTS}, 0")
    A("s_mov_b32 s92, 63")
    A("s_mov_b32 s90, 0")
ts(0)
A(f"v_mov_b32 {vT[1]}, {FLAG}")
A(f"v_mov_b32 {vT[2]}, 0")
A(f"ds_write_b32 {vT[1]}, {vT[2]}")
A(f"ds_write_b32 {vT[1]}, {vT[2]} offset:4")
A(f"ds_write_b32 {vT[1]}, {vT[2]} offset:8")
A(f"ds_write_b32 {vT[1]}, {vT[2]} offset:12")
vI, vSl = vT[3], vT[4]
A(f"v_and_b32 {vI}, 15, {vLANE}")
A(f"v_lshrrev_b32 {vSl}, 4, {vLANE}")
A(f"v_xor_b32 {vT[5]}, {vI}, {vSl}")
A(f"v_lshlrev_b32 {vT[5]}, 4, {vT[5]}")
A(f"v_lshl_add_u32 {vKq[0]}, {vSl}, 8, {vT[5]}")
for q in range(1, 4):
    A(f"v_xor_b32 {vKq[q]}, {q << 6}, {vKq[0]}")
A(f"v_lshlrev_b32 {vT[5]}, 1, {vSl}")
A(f"v_xor_b32 {vT[5]}, {vI}, {vT[5]}")
A(f"v_lshlrev_b32 {vT[5]}, 4, {vT[5]}")
A(f"v_lshl_add_u32 {vVq[0]}, {vSl}, 8, {vT[5]}")
A(f"v_xor_b32 {vVq[1]}, 0x80, {vVq[0]}")
A(f"v_xor_b32 {vT[8]}, {sW}, {vLANE}")
A(f"v_lshlrev_b32 {vT[8]}, 4, {vT[8]}")
A(f"v_lshrrev_b32 {vT[7]}, 1, {vLANE}")
A(f"v_and_b32 {vT[6]}, 1, {vLANE}")
A(f"v_lshlrev_b32 {vT[6]}, 4, {vT[6]}")
A(f"v_lshl_add_u32 {vT[7]}, {vT[7]}, 13, {vT[6]}")
A(f"s_lshl_b32 {sSTG}, {sW}, 13")
A(f"s_lshl_b32 {sT0}, {sW}, 2")
A(f"s_add_u32 {sT0}, {sT0}, {sJ}")
for T in range(4):
    A(f"s_add_u32 s{sTILE[T]}, {sT0}, {T}")
    A(f"s_and_b32 s{sTILE[T]}, s{sTILE[T]}, 31")
    A(f"s_lshl_b32 s{sTILE[T]}, s{sTILE[T]}, 12")
A(f"s_lshl_b32 {sT2}, {sB}, 3")
A(f"s_add_u32 {sT2}, {sT2}, {sG}")
A(f"s_lshl_b32 {sT2}, {sT2}, 21")
A(f"s_lshl_b32 {sT1}, {sS}, 17")
A(f"s_add_u32 {sT2}, {sT2}, {sT1}")
A(f"s_add_u32 {sT2}, {sT2}, 0x180000")
A(f"s_lshl_b32 {sT0}, {sG}, 10")
A(f"s_lshl_b32 {sT1}, {sJ}, 5")
A(f"s_add_u32 {sT0}, {sT0}, {sT1}")
A(f"s_sub_u32 {sT1}, 0x400000, {sT0}")
A("s_waitcnt lgkmcnt(0)")
A("s_barrier")
make_srd(S_K, P_K, off_sgpr=sT2, size=0x20000)
make_srd(S_T, P_WQ, off_sgpr=sT0, size=sT1)
make_srd(S_T2, P_X, size=8192)
def startup_loads():
    A(f"s_lshl_b32 {sT1}, {sW}, 10")
    A(f"s_add_u32 m0, {sT1}, {XSTG}")
    A(f"buffer_load_dwordx4 {vT[8]}, {srd(S_T2)}, {sT1} offen lds")
    ts(18)
    A(f"s_lshl_b32 {sT0}, {sJ}, 4")
    A(f"s_lshl_b32 {sT1}, {sW}, 1")
    A(f"s_add_u32 {sT0}, {sT0}, {sT1}")
    A(f"s_lshl_b32 {sT0}, {sT0}, 13")
    A(f"s_lshl_b32 {sT1}, {sJ}, 5")
    A(f"s_sub_u32 {sT0}, {sT0}, {sT1}")
    A(f"v_lshlrev_b32 {vT[6]}, 4, {vLANE}")
    if not NOWQF:
        A(f"buffer_load_dwordx4 v[240:243], {vT[6]}, {srd(S_T)}, {sT0} offen{PFNT}")
        A(f"s_add_u32 {sT0}, {sT0}, 8192")
        A(f"buffer_load_dwordx4 v[240:243], {vT[6]}, {srd(S_T)}, {sT0} offen{PFNT}")
    ts(19)


def wq_pieces():
    A(f"s_lshl_b32 {sT0}, {sG}, 10")
    A(f"s_lshl_b32 {sT1}, {sJ}, 5")
    A(f"s_add_u32 {sT0}, {sT0}, {sT1}")
    A(f"s_sub_u32 {sT1}, 0x400000, {sT0}")
    make_srd(S_T, P_WQ, off_sgpr=sT0, size=sT1)
    A(f"v_lshrrev_b32 {vT[7]}, 1, {vLANE}")
    A(f"v_and_b32 {vT[6]}, 1, {vLANE}")
    A(f"v_lshlrev_b32 {vT[6]}, 4, {vT[6]}")
    A(f"v_lshl_add_u32 {vT[7]}, {vT[7]}, 13, {vT[6]}")
    A(f"s_lshl_b32 {sT0}, {sW}, 11")
    A(f"s_add_u32 m0, {sT0}, {WQI}")
    A(f"s_lshl_b32 {sT1}, {sW}, 19")
    A(f"buffer_load_dwordx4 {vT[7]}, {srd(S_T)}, {sT1} offen lds")
    A(f"s_add_u32 m0, {sT0}, {WQI + 1024}")
    A(f"s_add_u32 {sT1}, {sT1}, {32*8192}")
    A(f"buffer_load_dwordx4 {vT[7]}, {srd(S_T)}, {sT1} offen lds")


def wo_prefetch():
    A(f"s_lshl_b32 {sT0}, {sG}, 9")
    A(f"s_lshl_b32 {sT1}, {sJ}, 4")
    A(f"s_add_u32 {sT0}, {sT0}, {sT1}")
    A(f"s_lshl_b32 {sT1}, {sW}, 1")
    A(f"s_add_u32 {sT0}, {sT0}, {sT1}")
    A(f"s_lshl_b32 {sT0}, {sT0}, 10")
    make_srd(S_T, P_WO, size=0x400000)
    A(f"v_lshlrev_b32 {vT[6]}, 4, {vLANE}")
    A(f"buffer_load_dwordx4 {vq(DUMMY)}, {vT[6]}, {srd(S_T)}, {sT0} offen{PFNT}")
    A(f"buffer_load_dwordx4 {vq(DUMMY)}, {vT[6]}, {srd(S_T)}, {sT0} offen offset:1024{PFNT}")


ts(24)
if not KFIRST:
    startup_loads()


def kv_one(i):
    n, q = i // 4, i % 4
    T = n % 4
    srdn, voffs = (S_K, vKq) if i < 16 else (S_V, vVq)
    if q == 0:
        A(f"s_add_u32 m0, {sSTG}, {(n & 1)*4096}")
    A(f"buffer_load_dwordx4 {voffs[q % len(voffs)]}, {srd(srdn)}, s{sTILE[T]} offen offset:{q*1024} nt lds")


def readout(n):
    slot = (n & 1) * 4096
    if n < 4:
        for c in range(4):
            A(f"ds_read_b128 {vq(KREG + (4*n+c)*4)}, {vKr[c]} offset:{slot}")
    else:
        T = n - 4
        u, half = T >> 1, T & 1
        for dt in range(8):
            a_ = vT[4 + (dt & 1)]
            if dt == 0:
                a_ = vVr0
            else:
                A(f"v_xor_b32 {a_}, {dt << 5}, {vVr0}")
            r = VREG + (8 * u + dt) * 4 + 2 * half
            A(f"ds_read_b64_tr_b16 v[{r}:{r+1}], {a_} offset:{slot}")


FIRST = 4
for i in range(FIRST):
    kv_one(i)
ts(21)
if KFIRST:
    startup_loads()
make_srd(S_V, P_V, off_sgpr=sT2, size=0x20000)
A(f"s_lshl_b32 {sT0}, {sG}, 18")
make_srd(S_G, P_WS, off_sgpr=sT0, size=0x40000)
A(f"s_lshl_b32 {sT0}, {sJ}, 13")
A(f"s_add_u32 {sT0}, {sT0}, {hex(AR_BASE)}")
make_srd(S_AR, P_WS, off_sgpr=sT0, size=0xC2000)
A(f"s_mov_b32 {sSPIN}, 0x40000")
A("s_mov_b32 s64, 0x00ff00ff")
A("s_mov_b32 s65, 0x00ff00ff")
A("s_mov_b32 s66, 0xff00ff00")
A("s_mov_b32 s67, 0xff00ff00")
A(f"s_sub_u32 {sCW}, {sW}, 4")
A("v_mov_b32 v250, 0")
lw0 = A.newlabel("L_pre0"); lpe = A.newlabel("L_pree")
A(f"s_cmp_eq_u32 {sW}, 0")
A(f"s_cbranch_scc1 {lw0}")
for i in range(4):
    A(f"v_mov_b32 v{DUMMY+i}, -1")
A(f"s_mul_i32 {sT0}, {sJ}, 7168")
A(f"s_lshl_b32 {sT1}, {sW}, 10")
A(f"s_add_u32 {sT0}, {sT0}, {sT1}")
A(f"s_add_u32 {sT0}, {sT0}, {G_CLR0 - 1024}")
A(f"v_lshl_add_u32 {vT[5]}, {vLANE}, 4, {sT0}")
if not NOCLR:
    A(f"buffer_store_dwordx4 {vq(DUMMY)}, {vT[5]}, {srd(S_G)}, 0 offen" + ("" if PLAINCLR else " sc1"))
lpf = A.newlabel("L_pf")
A(f"s_cmp_eq_u32 {sW}, 1")
A(f"s_cbranch_scc1 {lpf}")
A(f"s_branch {lpe}")
A.label(lpf)
A("s_getpc_b64 s[84:85]")
A(f"v_lshlrev_b32 {vT[8]}, 6, {vLANE}")
for i in range(NPF):
    A(f"global_load_dword {vT[9]}, {vT[8]}, s[84:85]")
    A("s_add_u32 s84, s84, 4096")
    A("s_addc_u32 s85, s85, 0")
A(f"s_branch {lpe}")
A.label(lw0)
make_srd(S_T, P_DBG, size=256)
lnl = A.newlabel("L_nolead")
A("s_cmp_eq_u32 s2, 0")
A(f"s_cbranch_scc0 {lnl}")
A("s_lshl_b32 s94, s94, 4")
A("s_or_b32 s94, s94, 0x80000000")
A("v_mov_b32 v251, s94")
A("s_mov_b64 exec, 1")
A(f"buffer_store_dword v251, v250, {srd(S_T)}, 0 offen sc1")
A("s_mov_b64 exec, -1")
A.label(lnl)
A(f"v_lshrrev_b32 {vT[8]}, 3, {vLANE}")
A(f"v_and_b32 {vT[9]}, 7, {vLANE}")
A(f"v_lshlrev_b32 {vT[9]}, 2, {vT[9]}")
A(f"v_lshl_add_u32 {vXNAT}, {vT[8]}, 10, {vT[9]}")
A(f"s_lshl_b32 {sT0}, {sJ}, 5")
A(f"v_add_u32 {vXNAT}, {sT0}, {vXNAT}")
A(f"buffer_load_dword {vXO0}, {vXNAT}, {srd(S_T2)}, 0 offen")
A.label(lpe)
ts(25)

A(f"v_and_b32 {vI}, 15, {vLANE}")
A(f"v_lshrrev_b32 {vSl}, 4, {vLANE}")
A(f"s_mov_b32 {sC1}, 0x3e0293ee")
A(f"s_mov_b32 {sINV512}, 0x3b000000")
A(f"s_mov_b32 {sEPS}, 0x3727c5ac")
A(f"s_mov_b32 {sNLOG2E}, 0xbfb8aa3b")
A(f"v_mov_b32 {vSENT}, -2")
for i in range(4):
    A(f"v_mov_b32 v{ONES+i}, 0x3f803f80")
A(f"v_xor_b32 {vT[5]}, {vI}, {vSl}")
A(f"v_lshlrev_b32 {vT[5]}, 4, {vT[5]}")
A(f"v_lshl_add_u32 {vT[5]}, {vI}, 8, {vT[5]}")
A(f"v_add_u32 {vKr[0]}, {sSTG}, {vT[5]}")
for c in range(1, 4):
    A(f"v_xor_b32 {vKr[c]}, {c << 6}, {vKr[0]}")
A(f"v_lshrrev_b32 {vT[5]}, 2, {vI}")
A(f"v_lshl_add_u32 {vT[5]}, {vSl}, 2, {vT[5]}")
A(f"v_and_b32 {vT[6]}, 7, {vT[5]}")
A(f"v_lshlrev_b32 {vT[6]}, 5, {vT[6]}")
A(f"v_lshl_add_u32 {vT[6]}, {vT[5]}, 8, {vT[6]}")
A(f"v_and_b32 {vT[7]}, 3, {vLANE}")
A(f"v_lshl_add_u32 {vT[6]}, {vT[7]}, 3, {vT[6]}")
A(f"v_add_u32 {vVr0}, {sSTG}, {vT[6]}")
A(f"s_lshl_b32 {sT0}, {sB}, 10")
A(f"v_lshlrev_b32 {vT[5]}, 4, {vT[7]}")
A(f"v_lshl_add_u32 {vT[5]}, {vSl}, 6, {vT[5]}")
A(f"v_add_u32 {vQOFF}, {sT0}, {vT[5]}")
A(f"v_xor_b32 {vT[5]}, {vSl}, {vT[7]}")
A(f"v_lshlrev_b32 {vT[5]}, 4, {vT[5]}")
A(f"v_lshl_add_u32 {vT[5]}, {vT[7]}, 9, {vT[5]}")
A(f"v_lshrrev_b32 {vT[6]}, 2, {vI}")
A(f"v_lshl_add_u32 {vT[5]}, {vT[6]}, 6, {vT[5]}")
A(f"v_add_u32 {vOPW}, {sSTG}, {vT[5]}")
A(f"s_lshr_b32 {sT0}, {sW}, 1")
A(f"s_lshl_b32 {sT1}, {sT0}, 9")
A(f"s_and_b32 {sT2}, {sW}, 1")
A(f"s_lshl_b32 {sT2}, {sT2}, 8")
A(f"s_add_u32 {sT1}, {sT1}, {sT2}")
A(f"v_lshrrev_b32 {vT[5]}, 2, {vLANE}")
A(f"v_and_b32 {vT[5]}, 3, {vT[5]}")
A(f"v_xor_b32 {vT[5]}, {sT0}, {vT[5]}")
A(f"v_lshlrev_b32 {vT[5]}, 4, {vT[5]}")
A(f"v_lshrrev_b32 {vT[6]}, 4, {vLANE}")
A(f"v_lshl_add_u32 {vT[5]}, {vT[6]}, 6, {vT[5]}")
A(f"v_and_b32 {vT[6]}, 3, {vLANE}")
A(f"v_lshl_add_u32 {vT[5]}, {vT[6]}, 2, {vT[5]}")
A(f"v_add_u32 {vOPR0}, {sT1}, {vT[5]}")
A(f"s_mul_i32 {sT1}, {sJ}, {OPS}")
A(f"s_lshl_b32 {sT2}, {sW}, 8")
A(f"s_add_u32 {sT1}, {sT1}, {sT2}")
A(f"v_lshl_add_u32 {vOPS}, {vLANE}, 2, {sT1}")
A(f"s_lshl_b32 {sT1}, {sW}, 5")
A(f"s_add_u32 {sT1}, {sT1}, {STAT}")
A(f"v_lshl_add_u32 {vSTW}, {vT[7]}, 3, {sT1}")
A(f"s_lshl_b32 {sT0}, {sT0}, 3")
A(f"s_add_u32 {sT0}, {sT0}, {STAT}")
A(f"v_mov_b32 {vSTR}, {sT0}")
A(f"v_lshlrev_b32 {vT[5]}, 4, {vI}")
A(f"v_lshl_add_u32 {vT[5]}, {vSl}, 7, {vT[5]}")
A(f"s_lshl_b32 {sT0}, {sCW}, 11")
A(f"v_add_u32 {vXOFF}, {sT0}, {vT[5]}")
A(f"s_lshl_b32 {sT0}, {sCW}, 10")
A(f"v_add_u32 {vHOFF}, {sT0}, {vT[5]}")
A(f"s_mul_i32 {sT0}, {sCW}, 3072")
A(f"s_add_u32 {sT0}, {sT0}, {PART}")
A(f"v_lshl_add_u32 {vPW}, {vLANE}, 4, {sT0}")
A(f"v_and_b32 {vT[8]}, 3, {vI}")
A(f"v_xor_b32 {vT[8]}, {vSl}, {vT[8]}")
A(f"v_lshlrev_b32 {vT[8]}, 4, {vT[8]}")
A(f"v_and_b32 {vT[6]}, 4, {vI}")
A(f"v_lshl_add_u32 {vT[8]}, {vT[6]}, 4, {vT[8]}")
A(f"v_and_b32 {vT[6]}, 7, {vI}")
A(f"v_lshl_add_u32 {vT[8]}, {vT[6]}, 10, {vT[8]}")
A(f"s_lshl_b32 {sT0}, {sCW}, 8")
A(f"v_xor_b32 {vX0R}, {sT0}, {vT[8]}")
A(f"v_lshrrev_b32 {vT[5]}, 2, {vI}")
A(f"v_lshl_add_u32 {vT[5]}, {vSl}, 3, {vT[5]}")
A(f"v_lshlrev_b32 {vT[5]}, 5, {vT[5]}")
A(f"v_and_b32 {vT[6]}, 3, {vLANE}")
A(f"v_lshl_add_u32 {vT[5]}, {vT[6]}, 3, {vT[5]}")
A(f"s_mul_i32 {sT0}, {sCW}, {WSTR}")
A(f"s_add_u32 {sT0}, {sT0}, {WBASE}")
A(f"v_add_u32 {vWOWN}, {sT0}, {vT[5]}")
A(f"s_lshl_b32 {sT0}, {sCW}, 12")
A(f"s_add_u32 {sT0}, {sT0}, {WQI}")
A(f"v_add_u32 {vWQ}, {sT0}, {vT[5]}")
vBb, vNp = vT[5], vT[6]
A(f"v_lshrrev_b32 {vBb}, 3, {vLANE}")
A(f"v_and_b32 {vNp}, 7, {vLANE}")
A(f"v_lshrrev_b32 {vT[7]}, 2, {vBb}")
A(f"v_lshlrev_b32 {vT[7]}, 8, {vT[7]}")
A(f"v_and_b32 {vT[8]}, 3, {vBb}")
A(f"v_lshl_add_u32 {vT[7]}, {vT[8]}, 2, {vT[7]}")
A(f"v_add_u32 {vT[7]}, {PART}, {vT[7]}")
A(f"v_lshl_add_u32 {vFA}, {vNp}, 5, {vT[7]}")
A(f"v_add_u32 {vFS1}, {2048 + 8*16}, {vT[7]}")
A(f"v_lshl_add_u32 {vFS2}, {vBb}, 4, {vT[7]}")
A(f"v_add_u32 {vFS2}, 2048, {vFS2}")
A(f"v_lshlrev_b32 {vT[8]}, 5, {vNp}")
A(f"v_add_u32 {vFC}, {PART + 32*16}, {vT[8]}")
A(f"s_lshl_b32 {sT0}, {sG}, 5")
A(f"s_add_u32 {sT0}, {sT0}, {sJ}")
A(f"s_mul_i32 {sT0}, {sT0}, 14")
A(f"s_and_b32 {sDELTA}, {sT0}, 15")
A(f"s_lshr_b32 {sDELTA}, {sDELTA}, 1")
A(f"v_add_u32 {vT[8]}, {sDELTA}, {vNp}")
A(f"v_lshl_add_u32 {vFG}, {vT[8]}, 4, {vT[7]}")
A(f"v_lshlrev_b32 {vT[8]}, 4, {vT[8]}")
A(f"v_add_u32 {vFCG}, {PART + 32*16}, {vT[8]}")
A(f"v_lshlrev_b32 {vALD}, 3, {vLANE}")
A(f"s_lshl_b32 {sT0}, {sG}, 10")
A(f"v_lshl_add_u32 {vAST}, {vLANE}, 4, {sT0}")
A(f"v_and_b32 {vT[8]}, 3, {vNp}")
A(f"v_lshlrev_b32 {vT[8]}, 2, {vT[8]}")
A(f"v_lshl_add_u32 {vT[8]}, {vBb}, 4, {vT[8]}")
A(f"v_lshrrev_b32 {vT[9]}, 2, {vNp}")
A(f"v_lshl_add_u32 {vXST}, {vT[9]}, 7, {vT[8]}")
A(f"s_lshl_b32 {sT0}, {sJ}, 8")
A(f"v_add_u32 {vXST}, {sT0}, {vXST}")
A(f"v_lshlrev_b32 {vT[8]}, 2, {vNp}")
A(f"v_lshl_add_u32 {vT[8]}, {vBb}, 10, {vT[8]}")
A(f"s_lshl_b32 {sT0}, {sJ}, 5")
A(f"v_add_u32 {vXNAT}, {sT0}, {vT[8]}")
A(f"s_and_b32 {sT0}, {sJ}, 7")
A(f"s_lshr_b32 {sT1}, {sT0}, 1")
A(f"s_lshl_b32 {sT1}, {sT1}, 8")
A(f"s_and_b32 {sT0}, {sJ}, 1")
A(f"s_lshl_b32 {sT0}, {sT0}, 7")
A(f"s_add_u32 {sT1}, {sT1}, {sT0}")
A(f"s_lshr_b32 {sT0}, {sJ}, 3")
A(f"s_lshl_b32 {sT0}, {sT0}, 4")
A(f"s_add_u32 {sT1}, {sT1}, {sT0}")
A(f"v_and_b32 {vT[8]}, 3, {vNp}")
A(f"v_lshlrev_b32 {vT[8]}, 2, {vT[8]}")
A(f"v_lshl_add_u32 {vT[8]}, {vT[9]}, 6, {vT[8]}")
A(f"v_lshl_add_u32 {vT[8]}, {vBb}, 10, {vT[8]}")
A(f"v_add_u32 {vQST}, {sT1}, {vT[8]}")
A(f"v_lshrrev_b32 {vT[8]}, 1, {vNp}")
A(f"v_lshlrev_b32 {vT[8]}, 2, {vT[8]}")
A(f"v_lshl_add_u32 {vT[8]}, {vBb}, 4, {vT[8]}")
A(f"s_lshl_b32 {sT0}, {sJ}, 7")
A(f"v_add_u32 {vHST}, {sT0}, {vT[8]}")
A(f"s_mul_i32 {sT0}, {sB}, {4*OPS}")
A(f"s_lshl_b32 {sT1}, {sS}, 9")
A(f"s_add_u32 {sT1}, {sT1}, {sT0}")
A(f"v_add_u32 {vH1a}, {sT1}, {vALD}")
A(f"v_add_u32 {vH1b}, {2*OPS}, {vH1a}")
A(f"s_lshl_b32 {sT1}, {sS}, 3")
A(f"s_add_u32 {sT1}, {sT1}, {sT0}")
A(f"s_add_u32 {sT1}, {sT1}, 2048")
A(f"v_mov_b32 {vH1sa}, {sT1}")
A(f"v_add_u32 {vH1sb}, {2*OPS}, {vH1sa}")
A(f"s_lshl_b32 {sT0}, {sB}, 4")
A(f"s_lshl_b32 {sT1}, {sS}, 11")
A(f"s_add_u32 {sT0}, {sT0}, {sT1}")
A(f"v_and_b32 {vT[8]}, 3, {vLANE}")
A(f"v_lshlrev_b32 {vT[8]}, 2, {vT[8]}")
A(f"v_lshrrev_b32 {vT[9]}, 2, {vLANE}")
A(f"v_lshl_add_u32 {vT[8]}, {vT[9]}, 7, {vT[8]}")
A(f"v_add_u32 {vONS}, {sT0}, {vT[8]}")


def hook_q1_partial():
    lab = A.newlabel("L_c1w")
    lds_spin(4, 8, lab)
    init_ones(4)
    A(f"s_mov_b64 exec, {M_X}")
    for i in range(4):
        a_ = vT[6 + (i & 1)]
        A(f"v_xor_b32 {a_}, {i*64}, {vX0R}")
        A(f"v_add_u32 {a_}, {XSTG}, {a_}")
        A(f"ds_read_b128 {vq(XR+4*i)}, {a_}")
    A("s_mov_b64 exec, -1")
    wread(WA, vWQ, 0, 4)
    A("s_waitcnt lgkmcnt(0)")
    q_partial_tail()
    lds_inc(8)
    ts(20)


def hook_nonce_issue():
    make_srd(S_T, P_DBG, size=256)
    A("s_mov_b64 exec, 1")
    A(f"buffer_load_dword v251, v250, {srd(S_T)}, 0 offen sc1")
    A("s_mov_b64 exec, -1")


def nonce_check():
    ln = A.newlabel("L_nonce"); lk = A.newlabel("L_nonce_ok")
    A.label(ln)
    A(f"v_readfirstlane_b32 {sNONCE}, v251")
    A(f"s_cmp_lg_u32 {sNONCE}, 0")
    A(f"s_cbranch_scc1 {lk}")
    A("s_sleep 4")
    make_srd(S_T, P_DBG, size=256)
    A("s_mov_b64 exec, 1")
    A(f"buffer_load_dword v251, v250, {srd(S_T)}, 0 offen sc1")
    A("s_mov_b64 exec, -1")
    A(f"s_sub_u32 {sSPIN}, {sSPIN}, 1")
    A("s_cbranch_scc1 L_END")
    A("s_waitcnt vmcnt(0)")
    A(f"s_branch {ln}")
    A.label(lk)


def hook_arrive():
    nonce_check()
    lab = A.newlabel("L_cBw")
    lds_spin(12, 8, lab)
    A("s_getreg_b32 s84, hwreg(HW_REG_XCC_ID, 0, 4)")
    if FORCE_SLOW:
        A(f"s_lshr_b32 {sT1}, {sJ}, 4")
        A(f"s_xor_b32 {sT0}, {sT0}, {sT1}")
    A(f"s_or_b32 {sINC}, {sT0}, {sNONCE}")
    A(f"v_mov_b32 {vT[9]}, {sINC}")
    A(f"s_lshl_b32 {sT0}, {sJ}, 4")
    A(f"v_mov_b32 {vT[8]}, {sT0}")
    A(f"s_mov_b32 {sT1}, {hex(G_ARR)}")
    A("s_mov_b64 exec, 1")
    A(f"buffer_store_dword {vT[9]}, {vT[8]}, {srd(S_G)}, {sT1} offen")
    A("s_mov_b64 exec, -1")
    ts(28)


def arr_issue(base):
    A(f"s_mov_b32 {sT1}, {hex(base)}")
    A("s_mov_b32 exec_lo, -1")
    A("s_mov_b32 exec_hi, 0")
    A(f"buffer_load_dword v253, v252, {srd(S_G)}, {sT1} offen sc1")
    A("s_mov_b64 exec, -1")


def hook_poll():
    A(f"v_lshlrev_b32 v252, 4, {vLANE}")
    arr_issue(G_ARR)


def hook_check():
    A(f"s_mov_b32 {sT2}, 3000")
    A.label("L_ARR")
    A("s_mov_b32 exec_lo, -1")
    A("s_mov_b32 exec_hi, 0")
    A(f"v_xor_b32 {vT[6]}, {sNONCE}, v253")
    A(f"v_cmp_lt_u32 vcc, 15, {vT[6]}")
    A("s_mov_b64 exec, -1")
    A("s_cbranch_vccz L_ARR_OK")
    A(f"s_sub_u32 {sT2}, {sT2}, 1")
    A("s_cbranch_scc1 L_ARR_SLOW")
    A(f"s_sleep {ARR_SLEEP}")
    arr_issue(G_ARR)
    A("s_waitcnt vmcnt(0)")
    A("s_branch L_ARR")
    A.label("L_ARR_OK")
    A("s_mov_b32 exec_lo, -1")
    A("s_mov_b32 exec_hi, 0")
    A(f"v_cmp_ne_u32 vcc, {sINC}, v253")
    A("s_mov_b64 exec, -1")
    A(f"s_mov_b32 {sMODE}, 1")
    A("s_cbranch_vccz L_MODE_OK")
    A.label("L_ARR_SLOW")
    A(f"s_mov_b32 {sMODE}, 2")
    A("buffer_wbl2 sc1")
    A("s_waitcnt vmcnt(0)")
    A(f"v_mov_b32 {vT[9]}, {sNONCE}")
    A(f"s_lshl_b32 {sT0}, {sJ}, 4")
    A(f"v_mov_b32 {vT[8]}, {sT0}")
    A(f"s_mov_b32 {sT1}, {hex(G_ARR2)}")
    A("s_mov_b64 exec, 1")
    A(f"buffer_store_dword {vT[9]}, {vT[8]}, {srd(S_G)}, {sT1} offen sc1")
    A("s_mov_b64 exec, -1")
    A.label("L_ARR2")
    arr_issue(G_ARR2)
    A(f"s_sub_u32 {sSPIN}, {sSPIN}, 1")
    A("s_cbranch_scc1 L_END")
    A("s_waitcnt vmcnt(0)")
    A("s_mov_b32 exec_lo, -1")
    A("s_mov_b32 exec_hi, 0")
    A(f"v_cmp_ne_u32 vcc, {sNONCE}, v253")
    A("s_mov_b64 exec, -1")
    A("s_cbranch_vccnz L_ARR2")
    A.label("L_MODE_OK")
    A(f"v_mov_b32 {vT[6]}, {FLAG}")
    A(f"v_mov_b32 {vT[7]}, {sMODE}")
    A(f"ds_write_b32 {vT[6]}, {vT[7]}")
    ts(27)


def hook_q1_final():
    lab = A.newlabel("L_c2w")
    lds_spin(8, 4, lab)
    ts(1)
    q_finalize()
    A(f"v_and_b32 {vXO1}, 0xffff0000, {vXO0}")
    A(f"v_lshlrev_b32 {vXO0}, 16, {vXO0}")
    A(f"v_mov_b32 {vT[2]}, {vT[1]}")
    A(f"v_mov_b32 {vT[3]}, {sNONCE}")
    A(f"s_lshl_b32 {sT0}, {sJ}, 9")
    A(f"s_add_u32 {sT0}, {sT0}, {hex(G_Q0)}")
    A(f"buffer_store_dwordx2 v[46:47], {vALD}, {srd(S_G)}, {sT0} offen sc1")
    ts(2)


def gather_issue():
    A(f"v_lshrrev_b32 v248, 1, {vLANE}")
    A(f"v_lshlrev_b32 v248, 9, v248")
    A(f"v_and_b32 v249, 1, {vLANE}")
    A(f"v_lshl_add_u32 v248, v249, 5, v248")
    A(f"s_lshl_b32 {sT0}, {sB}, 6")
    A(f"s_add_u32 {sT0}, {sT0}, {hex(G_Q0)}")
    A(f"buffer_load_dwordx4 v[240:243], v248, {srd(S_G)}, {sT0} offen sc1")
    A(f"buffer_load_dwordx4 v[244:247], v248, {srd(S_G)}, {sT0} offen offset:16 sc1")


def hook_gather_check():
    lp = A.newlabel("L_gq"); lo = A.newlabel("L_gq_ok")
    A.label(lp)
    A(f"v_xor_b32 {vT[6]}, {sNONCE}, v241")
    A(f"v_xor_b32 {vT[7]}, {sNONCE}, v243")
    A(f"v_xor_b32 {vT[8]}, {sNONCE}, v245")
    A(f"v_xor_b32 {vT[9]}, {sNONCE}, v247")
    A(f"v_or3_b32 {vT[6]}, {vT[6]}, {vT[7]}, {vT[8]}")
    A(f"v_or_b32 {vT[6]}, {vT[6]}, {vT[9]}")
    A(f"v_cmp_ne_u32 vcc, 0, {vT[6]}")
    A(f"s_cbranch_vccz {lo}")
    A("s_sleep 2")
    gather_issue()
    A(f"s_sub_u32 {sSPIN}, {sSPIN}, 1")
    A("s_cbranch_scc1 L_END")
    A("s_waitcnt vmcnt(0)")
    A(f"s_branch {lp}")
    A.label(lo)
    A("v_mov_b32 v241, v242")
    A("v_mov_b32 v242, v244")
    A("v_mov_b32 v243, v246")
    A(f"v_lshrrev_b32 v248, 2, {vLANE}")
    A(f"v_and_b32 v248, 3, v248")
    A(f"v_lshlrev_b32 v248, 8, v248")
    A(f"v_and_b32 v249, 3, {vLANE}")
    A(f"v_lshl_add_u32 v248, v249, 6, v248")
    A(f"v_lshrrev_b32 v249, 4, {vLANE}")
    A(f"v_lshl_add_u32 v248, v249, 4, v248")
    A(f"v_add_u32 v248, {QBUF}, v248")
    A("ds_write_b128 v248, v[240:243]")
    ts(3)


def stream(Dsched, hooks, cnt_at):
    done = set()
    cntA_at = PI + Dsched(PI)
    for i in range(FIRST, 32):
        D = Dsched(i)
        if i >= D:
            A(f"s_waitcnt vmcnt({D-1})")
        for n in range(8):
            if n not in done and 4 * n + 3 <= i - D:
                readout(n)
                done.add(n)
        if i >= 8 and i % 4 == 0:
            assert (i // 4 - 2) in done
            A("s_waitcnt lgkmcnt(0)")
        if i == PI and not NOWQP:
            A(f"s_mov_b32 {sM0SAVE}, m0")
            wq_pieces()
            A(f"s_mov_b32 m0, {sM0SAVE}")
        if i == WOPF and not NOWOPF:
            wo_prefetch()
        if i == cntA_at:
            lds_inc(4)
            ts(29)
        if i == cnt_at:
            lds_inc(12)
        if i in hooks:
            A(f"s_mov_b32 {sM0SAVE}, m0")
            hooks[i]()
            A(f"s_mov_b32 m0, {sM0SAVE}")
        kv_one(i)
        if i == 15:
            ts(26)
    for n in range(4, 7):
        if n not in done:
            A(f"s_waitcnt vmcnt({31 - (4*n+3)})")
            readout(n)


A(f"s_cmp_eq_u32 {sW}, 0")
A("s_cbranch_scc0 L_NOTW0")
AI = FIRST + D0 + 2
QF = PI + D0 + 2
GI2 = QF + GGAP
PA = opt("pa", 25)
stream(lambda i: D0, {FIRST: hook_nonce_issue, AI: hook_arrive, QF: hook_q1_final, GI2: gather_issue,
                      GI2 + D0: hook_gather_check, PA: hook_poll, min(PA + D0, 31): hook_check}, FIRST + D0)
A("s_branch L_STRM_DONE")
A.label("L_NOTW0")
A(f"s_cmp_lt_u32 {sW}, 4")
A("s_cbranch_scc0 L_CSTREAM")
stream(lambda i: DK if i < 16 else DV, {}, FIRST + DK)
if PREWARM:
    A(f"v_mov_b32 {vT[5]}, {FLAG}")
    A.label("L_fw")
    A(f"ds_read_b32 {vT[6]}, {vT[5]}")
    A(f"s_sub_u32 {sSPIN}, {sSPIN}, 1")
    A("s_cbranch_scc1 L_END")
    A("s_waitcnt lgkmcnt(0)")
    A(f"v_cmp_eq_u32 vcc, 0, {vT[6]}")
    A("s_cbranch_vccnz L_fw")
    A(f"s_mul_i32 {sT0}, {sJ}, 7168")
    A(f"s_add_u32 {sT0}, {sT0}, {G_CLR0}")
    A(f"s_sub_u32 {sT1}, {sW}, 1")
    A(f"s_mul_i32 {sT1}, {sT1}, 3072")
    A(f"s_add_u32 {sT0}, {sT0}, {sT1}")
    A(f"v_lshl_add_u32 {vT[5]}, {vLANE}, 4, {sT0}")
    for i in range(3):
        A(f"buffer_load_dwordx4 {vq(DUMMY)}, {vT[5]}, {srd(S_G)}, 0 offen offset:{i*1024} sc1")
A("s_branch L_STRM_DONE")
A.label("L_CSTREAM")
stream(lambda i: DK if i < 16 else DV, {PI + DK + 1: hook_q1_partial}, FIRST + DK)
A(f"s_lshl_b32 {sT0}, {sG}, 19")
A(f"s_lshl_b32 {sT1}, {sJ}, 5")
A(f"s_add_u32 {sT0}, {sT0}, {sT1}")
A(f"s_sub_u32 {sT1}, 0x400000, {sT0}")
make_srd(S_T, P_WO, off_sgpr=sT0, size=sT1)
A(f"v_lshrrev_b32 {vT[6]}, 1, {vLANE}")
A(f"v_and_b32 {vT[7]}, 1, {vLANE}")
A(f"v_lshlrev_b32 {vT[7]}, 4, {vT[7]}")
A(f"v_lshl_add_u32 {vT[6]}, {vT[6]}, 10, {vT[7]}")
A(f"s_lshl_b32 {sT0}, {sCW}, 17")
A(f"s_mul_i32 {sT2}, {sCW}, {WSTR}")
for i in range(4):
    A(f"s_add_u32 m0, {sT2}, {WBASE + W_WO + i*1024}")
    A(f"s_add_u32 {sT1}, {sT0}, {i*32*1024}")
    A(f"buffer_load_dwordx4 {vT[6]}, {srd(S_T)}, {sT1} offen{WNT} lds")
A.label("L_STRM_DONE")
ts(4)
A("s_waitcnt lgkmcnt(0)")
A("s_barrier")
A(f"v_mov_b32 {vT[5]}, {FLAG}")
A(f"ds_read_b32 {vT[6]}, {vT[5]}")
A(f"v_and_b32 {vT[7]}, 3, {vLANE}")
A(f"v_lshlrev_b32 {vT[7]}, 4, {vT[7]}")
A(f"v_lshrrev_b32 {vT[8]}, 4, {vLANE}")
A(f"v_lshl_add_u32 {vT[7]}, {vT[8]}, 6, {vT[7]}")
A(f"v_add_u32 {vT[7]}, {QBUF}, {vT[7]}")
QOP = WK
for c in range(4):
    A(f"ds_read_b128 {vq(QOP+4*c)}, {vT[7]} offset:{c*256}")
A("s_waitcnt lgkmcnt(0)")
A(f"v_readfirstlane_b32 {sMODE}, {vT[6]}")
A(f"s_mov_b32 {sL}, 0")
ts(5)
A("s_branch L_ATT")


def finalize_partial_and_ar(soff_ar, tsb):
    R = WK
    A(f"v_add_u32 {vT[1]}, 16, {vFA}")
    rd4(R, vFA, 0)
    rd4(R + 4, vT[1], 0)
    A(f"v_mov_b32 v{R+9}, {sNONCE}")
    A(f"v_mov_b32 v{R+11}, {sNONCE}")
    A(f"v_lshlrev_b32 {vT[2]}, 4, {vLANE}")
    A(f"v_add_u32 {vT[3]}, 4096, {vT[2]}")
    A("s_waitcnt lgkmcnt(0)")
    sum4(f"v{R+8}", R)
    sum4(f"v{R+10}", R + 4)
    A(f"buffer_store_dwordx4 v[{R+8}:{R+11}], {vAST}, {srd(S_AR)}, {soff_ar} offen sc1")
    ts(tsb, True)
    Q = R + 12
    lp = A.newlabel("L_arp")
    if DLY_AR:
        A(f"s_sleep {DLY_AR}")
    A.label(lp)
    for gg in range(8):
        A(f"buffer_load_dwordx4 {vq(Q+4*gg)}, {vT[2 + (gg >> 2)]}, {srd(S_AR)}, {soff_ar} offen offset:{(gg & 3)*1024} sc1")
    A(f"s_sub_u32 {sSPIN}, {sSPIN}, 1")
    A("s_cbranch_scc1 L_END")
    A("s_waitcnt vmcnt(0)")
    tags = [Q + 4 * gg + k for gg in range(8) for k in (1, 3)]
    A(f"v_min3_u32 {vT[5]}, v{tags[0]}, v{tags[1]}, v{tags[2]}")
    A(f"v_max3_u32 {vT[6]}, v{tags[0]}, v{tags[1]}, v{tags[2]}")
    i = 3
    while i < 16:
        if i + 1 < 16:
            A(f"v_min3_u32 {vT[5]}, {vT[5]}, v{tags[i]}, v{tags[i+1]}")
            A(f"v_max3_u32 {vT[6]}, {vT[6]}, v{tags[i]}, v{tags[i+1]}")
            i += 2
        else:
            A(f"v_min_u32 {vT[5]}, {vT[5]}, v{tags[i]}")
            A(f"v_max_u32 {vT[6]}, {vT[6]}, v{tags[i]}")
            i += 1
    A(f"v_xor_b32 {vT[5]}, {sNONCE}, {vT[5]}")
    A(f"v_xor_b32 {vT[6]}, {sNONCE}, {vT[6]}")
    A(f"v_or_b32 {vT[5]}, {vT[5]}, {vT[6]}")
    A(f"v_cmp_ne_u32 vcc, 0, {vT[5]}")
    A(f"s_cbranch_vccnz {lp}")
    B = R + 44
    for k in (0, 1):
        A(f"v_add_f32 v{B+k}, v{Q+2*k}, v{Q+4+2*k}")
        A(f"v_add_f32 v{B+2+k}, v{Q+8+2*k}, v{Q+12+2*k}")
        A(f"v_add_f32 v{B+4+k}, v{Q+16+2*k}, v{Q+20+2*k}")
        A(f"v_add_f32 v{B+6+k}, v{Q+24+2*k}, v{Q+28+2*k}")
    for k in (0, 1):
        A(f"v_add_f32 v{B+k}, v{B+k}, v{B+2+k}")
        A(f"v_add_f32 v{B+4+k}, v{B+4+k}, v{B+6+k}")
    for k in (0, 1):
        A(f"v_add_f32 v{B+k}, v{B+k}, v{B+4+k}")
    A(f"v_cvt_pk_bf16_f32 {vT[1]}, v{B}, v{B+1}")
    A(f"v_lshlrev_b32 v{B}, 16, {vT[1]}")
    A(f"v_and_b32 v{B+1}, 0xffff0000, {vT[1]}")
    A(f"v_add_f32 v{B}, v{B}, {vXO0}")
    A(f"v_add_f32 v{B+1}, v{B+1}, {vXO1}")
    A(f"v_cvt_pk_bf16_f32 {vT[1]}, v{B}, v{B+1}")
    A(f"v_lshlrev_b32 {vXO0}, 16, {vT[1]}")
    A(f"v_and_b32 {vXO1}, 0xffff0000, {vT[1]}")
    sanitize(vT[1])


A.label("L_LAYER")
lq = A.newlabel("L_q_nc")
role_compute(lq)
init_ones(4)
wread(WA, vWQ, 0, 4)
xpoll(vXOFF, sOXA, 4, SL_X)
A("s_waitcnt lgkmcnt(0)")
ts(20, True)
q_partial_tail()
A.label(lq)
A("s_barrier")
lq2 = A.newlabel("L_q_nf")
role_w0(lq2)
q_finalize()
sanitize(vT[1])
group_store(f"buffer_store_dword {vT[1]}, {vQST}, {srd(S_G)}, {sOQ} offen")
ts(21, True)
A.label(lq2)
for i in range(16):
    A(f"v_mov_b32 v{QOP+i}, 0")
A("s_barrier")


def qissue():
    A("s_mov_b32 exec_lo, 0x000f000f")
    A("s_mov_b32 exec_hi, 0x000f000f")
    for c in range(4):
        A(f"buffer_load_dwordx4 {vq(QOP+4*c)}, {vQOFF}, {srd(S_G)}, {sOQ} offen offset:{c*256} sc1")
    A("s_mov_b64 exec, -1")


poll(qissue, range(QOP, QOP + 16), SL_Q)
ts(22, True)

A.label("L_ATT")
A(f"s_lshl_b32 {sT0}, {sL}, 13")
A(f"s_add_u32 {sOON}, {sT0}, {hex(G_ON)}")
A(f"s_lshl_b32 {sT1}, {sL}, 14")
A(f"s_add_u32 {sOXO1}, {sT1}, {hex(G_XA)}")
A(f"s_mul_i32 {sT1}, {sL}, {32*OPS}")
A(f"s_add_u32 {sOOP}, {sT1}, {hex(G_OP)}")
A(f"s_lshl_b32 {sT1}, {sL}, 12")
A(f"s_add_u32 {sOH}, {sT1}, {hex(G_H)}")
A(f"s_lshl_b32 {sOAR1}, {sL}, 19")
A(f"s_add_u32 {sOAR2}, {sOAR1}, 0x40000")
SC = WK + 36
PQ = WK + 52
OA = WK
LA = WK + 32
for T in range(4):
    for c in range(4):
        cc = "0" if c == 0 else vq(SC + 4 * T)
        A(f"v_mfma_f32_16x16x32_bf16 {vq(SC+4*T)}, {vq(KREG+(4*T+c)*4)}, {vq(QOP+4*c)}, {cc}")
m0, m1 = vT[0], vT[1]
A(f"v_max3_f32 {m0}, v{SC}, v{SC+1}, v{SC+2}")
A(f"v_max3_f32 {m1}, v{SC+4}, v{SC+5}, v{SC+6}")
A(f"v_max3_f32 {m0}, {m0}, v{SC+3}, v{SC+7}")
A(f"v_max3_f32 {m1}, {m1}, v{SC+8}, v{SC+9}")
A(f"v_max3_f32 {m0}, {m0}, v{SC+10}, v{SC+11}")
A(f"v_max3_f32 {m1}, {m1}, v{SC+12}, v{SC+13}")
A(f"v_max3_f32 {m0}, {m0}, v{SC+14}, v{SC+15}")
A(f"v_max_f32 {m0}, {m0}, {m1}")
A(f"v_mov_b32 {m1}, {m0}")
A(f"v_permlane32_swap_b32 {m0}, {m1}")
A(f"v_max_f32 {m0}, {m0}, {m1}")
A(f"v_mov_b32 {m1}, {m0}")
A(f"v_permlane16_swap_b32 {m0}, {m1}")
A(f"v_max_f32 {m0}, {m0}, {m1}")
MP = vT[2]
A(f"v_mul_f32 {MP}, {sC1}, {m0}")
for i in range(16):
    A(f"v_fma_f32 v{SC+i}, v{SC+i}, {sC1}, -{MP}")
for i in range(16):
    A(f"v_exp_f32 v{SC+i}, v{SC+i}")
for u in range(2):
    for k in range(4):
        A(f"v_cvt_pk_bf16_f32 v{PQ+4*u+k}, v{SC+8*u+2*k}, v{SC+8*u+2*k+1}")
ts(6, True)


def v_stage():
    l = A.newlabel("L_vs")
    A(f"s_cmp_eq_u32 {sL}, 0")
    A(f"s_cbranch_scc0 {l}")
    lc = A.newlabel("L_vc"); lc2 = A.newlabel("L_vc2")
    A(f"s_cmp_lt_u32 {sW}, 4")
    A(f"s_cbranch_scc1 {lc}")
    A("s_waitcnt vmcnt(4)")
    A(f"s_branch {lc2}")
    A.label(lc)
    A("s_waitcnt vmcnt(0)")
    A.label(lc2)
    readout(7)
    A("s_waitcnt lgkmcnt(0)")
    A.label(l)


for u in range(2):
    if u == 1:
        v_stage()
    for dt in range(8):
        cc = "0" if u == 0 else vq(OA + 4 * dt)
        A(f"v_mfma_f32_16x16x32_bf16 {vq(OA+4*dt)}, {vq(VREG+(8*u+dt)*4)}, {vq(PQ+4*u)}, {cc}")
    cc = "0" if u == 0 else vq(LA)
    A(f"v_mfma_f32_16x16x32_bf16 {vq(LA)}, {vq(ONES)}, {vq(PQ+4*u)}, {cc}")
ts(7, True)
for half in range(2):
    for cg in range(1, 4):
        for r in range(4):
            A(f"v_mov_b32_dpp v{OA+16*half+r}, v{OA+16*half+4*cg+r} row_shr:{4*cg} row_mask:0xf bank_mask:{hex(1 << cg)}")
    A(f"ds_write_b128 {vOPW}, {vq(OA+16*half)} offset:{half*256}")
A("s_mov_b64 exec, 0xf")
A(f"v_mov_b32 {vT[4]}, {MP}")
A(f"v_mov_b32 {vT[5]}, v{LA}")
A(f"ds_write_b64 {vSTW}, v[48:49]")
A("s_mov_b64 exec, -1")
A("s_waitcnt lgkmcnt(0)")
A("s_barrier")
R = WK
for w in range(8):
    A(f"ds_read_b64 v[{R+8+2*w}:{R+9+2*w}], {vSTR} offset:{w*32}")
for w in range(8):
    A(f"ds_read_b32 v{R+w}, {vOPR0} offset:{w*8192}")
A("s_waitcnt lgkmcnt(8)")
MM = vT[0]
A(f"v_max3_f32 {MM}, v{R+8}, v{R+10}, v{R+12}")
A(f"v_max3_f32 {MM}, {MM}, v{R+14}, v{R+16}")
A(f"v_max3_f32 {MM}, {MM}, v{R+18}, v{R+20}")
A(f"v_max_f32 {MM}, {MM}, v{R+22}")
for w in range(8):
    A(f"v_sub_f32 v{R+8+2*w}, v{R+8+2*w}, {MM}")
for w in range(8):
    A(f"v_exp_f32 v{R+8+2*w}, v{R+8+2*w}")
OO, LL = vT[4], vT[5]
A("s_waitcnt lgkmcnt(0)")
A(f"v_mul_f32 {OO}, v{R}, v{R+8}")
A(f"v_mul_f32 {LL}, v{R+9}, v{R+8}")
for w in range(1, 8):
    A(f"v_fmac_f32 {OO}, v{R+w}, v{R+8+2*w}")
    A(f"v_fmac_f32 {LL}, v{R+9+2*w}, v{R+8+2*w}")
sanitize(OO)
group_store(f"buffer_store_dword {OO}, {vOPS}, {srd(S_G)}, {sOOP} offen")
lst = A.newlabel("L_nst")
A(f"s_and_b32 {sT0}, {sW}, 1")
A(f"s_cmp_eq_u32 {sT0}, 0")
A(f"s_cbranch_scc0 {lst}")
A(f"v_min_u32 {vT[6]}, {vSENT}, {MM}")
A(f"v_min_u32 {vT[7]}, {vSENT}, {LL}")
A(f"s_mul_i32 {sT0}, {sJ}, {OPS}")
A(f"s_lshl_b32 {sT1}, {sW}, 2")
A(f"s_add_u32 {sT0}, {sT0}, {sT1}")
A(f"s_add_u32 {sT0}, {sT0}, 2048")
A(f"v_mov_b32 {vT[8]}, {sT0}")
A("s_mov_b64 exec, 1")
group_store(f"buffer_store_dwordx2 v[50:51], {vT[8]}, {srd(S_G)}, {sOOP} offen")
A("s_mov_b64 exec, -1")
A.label(lst)
ts(8, True)
lgu = A.newlabel("L_ngu")
A(f"s_cmp_eq_u32 {sL}, 0")
A(f"s_cbranch_scc0 {lgu}")
A(f"s_cmp_eq_u32 {sW}, 0")
A(f"s_cbranch_scc1 {lgu}")
A(f"s_cmp_gt_u32 {sW}, 3")
A(f"s_cbranch_scc1 {lgu}")
A(f"v_lshrrev_b32 {vT[4]}, 1, {vLANE}")
A(f"v_and_b32 {vT[5]}, 1, {vLANE}")
A(f"v_lshlrev_b32 {vT[5]}, 4, {vT[5]}")
ldn = A.newlabel("L_dn")
A(f"s_cmp_eq_u32 {sW}, 3")
A(f"s_cbranch_scc1 {ldn}")
A(f"s_lshl_b32 {sT0}, {sG}, 5")
A(f"s_add_u32 {sT0}, {sT0}, {sJ}")
A(f"s_mul_i32 {sT0}, {sT0}, 14")
A(f"s_and_b32 {sT0}, {sT0}, 0xfffffff0")
A(f"s_sub_u32 {sT1}, {512*3584}, {sT0}")
A(f"s_cmp_eq_u32 {sW}, 1")
A(f"s_cselect_b32 {sT2}, s{P_WG}, s{P_WU}")
A(f"s_cselect_b32 {sT3}, s{P_WG+1}, s{P_WU+1}")
A(f"s_cselect_b32 {sT4}, 0, {W_U - W_G}")
A(f"s_add_u32 s{S_T}, {sT2}, {sT0}")
A(f"s_addc_u32 s{S_T+1}, {sT3}, 0")
A(f"s_mov_b32 s{S_T+2}, {sT1}")
A(f"s_mov_b32 s{S_T+3}, 0x20000")
A(f"s_mov_b32 s{S_T2}, {sT2}")
A(f"s_mov_b32 s{S_T2+1}, {sT3}")
A(f"s_mov_b32 s{S_T2+2}, {512*3584}")
A(f"s_mov_b32 s{S_T2+3}, 0x20000")
A(f"v_lshrrev_b32 {vT[7]}, 5, {vLANE}")
A(f"v_mul_u32_u24 {vT[7]}, 3584, {vT[7]}")
A(f"v_and_b32 {vT[8]}, 31, {vLANE}")
A(f"v_lshl_add_u32 {vT[7]}, {vT[8]}, 4, {vT[7]}")
A(f"s_mul_i32 {sT0}, {sG}, 448")
A(f"s_and_b32 {sT0}, {sT0}, 0xffffff80")
A(f"s_mul_i32 {sT1}, {sJ}, {16*3584}")
A(f"s_add_u32 {sT0}, {sT0}, {sT1}")
for i in range(8):
    A(f"buffer_load_dwordx4 {vq(DUMMY)}, {vT[7]}, {srd(S_T2)}, {sT0} offen{PFNT}")
    if i < 7:
        A(f"s_add_u32 {sT0}, {sT0}, {2*3584}")
A(f"v_mul_u32_u24 {vT[6]}, 3584, {vT[4]}")
A(f"v_add_u32 {vT[6]}, {vT[6]}, {vT[5]}")
A("s_waitcnt vmcnt(0)")
A(f"s_sleep {PFSL}")
for cw in range(4):
    for i in range(4):
        A(f"s_add_u32 m0, {sT4}, {WBASE + W_G + cw*WSTR + i*1024}")
        A(f"s_mov_b32 {sT1}, {(128*cw + 32*i)*3584}")
        A(f"buffer_load_dwordx4 {vT[6]}, {srd(S_T)}, {sT1} offen{WNT} lds")
A(f"s_branch {lgu}")
A.label(ldn)
A(f"s_mul_i32 {sT0}, {sG}, {224*1024}")
A(f"s_lshl_b32 {sT1}, {sJ}, 5")
A(f"s_add_u32 {sT0}, {sT0}, {sT1}")
A(f"s_sub_u32 {sT1}, {1792*1024}, {sT0}")
make_srd(S_T, P_WD, off_sgpr=sT0, size=sT1)
make_srd(S_T2, P_WD, size=1792*1024)
A(f"s_mul_i32 {sT0}, {sG}, 224")
A(f"s_mul_i32 {sT1}, {sJ}, 7")
A(f"s_add_u32 {sT0}, {sT0}, {sT1}")
A(f"s_lshl_b32 {sT0}, {sT0}, 10")
A(f"v_lshlrev_b32 {vT[7]}, 4, {vLANE}")
for i in range(7):
    A(f"buffer_load_dwordx4 {vq(DUMMY)}, {vT[7]}, {srd(S_T2)}, {sT0} offen{PFNT}")
    if i < 6:
        A(f"s_add_u32 {sT0}, {sT0}, 1024")
A("s_waitcnt vmcnt(0)")
A(f"s_sleep {PFSL}")
A(f"v_lshrrev_b32 {vT[6]}, 3, {vT[4]}")
A(f"v_mul_u32_u24 {vT[6]}, 7, {vT[6]}")
A(f"v_and_b32 {vT[7]}, 7, {vT[4]}")
A(f"v_add_u32 {vT[6]}, {vT[6]}, {vT[7]}")
A(f"v_lshl_add_u32 {vT[6]}, {vT[6]}, 10, {vT[5]}")
A(f"v_mov_b32 {vT[8]}, 0x40000000")
A(f"v_cmp_eq_u32 vcc, 7, {vT[7]}")
A(f"v_cndmask_b32 {vT[6]}, {vT[6]}, {vT[8]}, vcc")
for cw in range(4):
    for i in range(2):
        A(f"s_mov_b32 m0, {WBASE + cw*WSTR + W_D + i*1024}")
        A(f"s_mov_b32 {sT1}, {(56*cw + 28*i)*1024}")
        A(f"buffer_load_dwordx4 {vT[6]}, {srd(S_T)}, {sT1} offen{WNT} lds")
A.label(lgu)
if STOP == "att":
    A("s_branch L_FIN")

lh1 = A.newlabel("L_nh1")
role_w0(lh1)
R = WK


def h1issue():
    A(f"buffer_load_dwordx2 v[{R}:{R+1}], {vH1a}, {srd(S_G)}, {sOOP} offen sc1")
    A(f"buffer_load_dwordx2 v[{R+2}:{R+3}], {vH1a}, {srd(S_G)}, {sOOP} offen offset:{OPS} sc1")
    A(f"buffer_load_dwordx2 v[{R+4}:{R+5}], {vH1b}, {srd(S_G)}, {sOOP} offen sc1")
    A(f"buffer_load_dwordx2 v[{R+6}:{R+7}], {vH1b}, {srd(S_G)}, {sOOP} offen offset:{OPS} sc1")
    A(f"buffer_load_dwordx2 v[{R+8}:{R+9}], {vH1sa}, {srd(S_G)}, {sOOP} offen sc1")
    A(f"buffer_load_dwordx2 v[{R+10}:{R+11}], {vH1sa}, {srd(S_G)}, {sOOP} offen offset:{OPS} sc1")
    A(f"buffer_load_dwordx2 v[{R+12}:{R+13}], {vH1sb}, {srd(S_G)}, {sOOP} offen sc1")
    A(f"buffer_load_dwordx2 v[{R+14}:{R+15}], {vH1sb}, {srd(S_G)}, {sOOP} offen offset:{OPS} sc1")


poll(h1issue, range(R, R + 16))
MM = vT[0]
A(f"v_max3_f32 {MM}, v{R+8}, v{R+10}, v{R+12}")
A(f"v_max_f32 {MM}, {MM}, v{R+14}")
for s in range(4):
    A(f"v_sub_f32 v{R+8+2*s}, v{R+8+2*s}, {MM}")
for s in range(4):
    A(f"v_exp_f32 v{R+8+2*s}, v{R+8+2*s}")
A(f"v_mul_f32 {vT[1]}, v{R+9}, v{R+8}")
A(f"v_mul_f32 {vT[2]}, v{R}, v{R+8}")
A(f"v_mul_f32 {vT[3]}, v{R+1}, v{R+8}")
for s in range(1, 4):
    A(f"v_fmac_f32 {vT[1]}, v{R+9+2*s}, v{R+8+2*s}")
    A(f"v_fmac_f32 {vT[2]}, v{R+2*s}, v{R+8+2*s}")
    A(f"v_fmac_f32 {vT[3]}, v{R+2*s+1}, v{R+8+2*s}")
A(f"v_rcp_f32 {vT[1]}, {vT[1]}")
A(f"v_mul_f32 {vT[2]}, {vT[2]}, {vT[1]}")
A(f"v_mul_f32 {vT[3]}, {vT[3]}, {vT[1]}")
A(f"v_cvt_pk_bf16_f32 {vT[2]}, {vT[2]}, {vT[3]}")
sanitize(vT[2])
group_store(f"buffer_store_dword {vT[2]}, {vONS}, {srd(S_G)}, {sOON} offen")
ts(9, True)
A.label(lh1)
lwo0 = A.newlabel("L_nwo0")
role_compute(lwo0)
init_ones(4)
A("s_waitcnt vmcnt(0)")
ts(23, True)
wread(WA, vWOWN, W_WO, 4)
A.label(lwo0)
A("s_barrier")
lwo = A.newlabel("L_nwo2")
role_compute(lwo)
xpoll(vXOFF, sOON, 4, SL_ON)
A("s_waitcnt lgkmcnt(0)")
ts(10, True)
chain(AC0, WA, 4)
A(f"ds_write_b128 {vPW}, {vq(AC0)}")
A("s_waitcnt lgkmcnt(0)")
A.label(lwo)
A("s_barrier")
lwf = A.newlabel("L_nwf")
role_w0(lwf)
finalize_partial_and_ar(sOAR1, 11)
group_store(f"buffer_store_dword {vT[1]}, {vXST}, {srd(S_G)}, {sOXO1} offen")
ts(12, True)
A.label(lwf)
lnw = A.newlabel("L_nwait")
A(f"s_cmp_eq_u32 {sW}, 0")
A(f"s_cbranch_scc1 {lnw}")
A("s_waitcnt vmcnt(0)")
A.label(lnw)
A("s_barrier")
if STOP == "x1":
    A("s_branch L_FIN")

lg = A.newlabel("L_ng")
role_compute(lg)
init_ones(4)
wread(WA, vWOWN, W_G, 4)
wread(WB, vWOWN, W_U, 4)
xpoll(vXOFF, sOXO1, 4, SL_X)
A("s_waitcnt lgkmcnt(0)")
ts(13, True)
gram(AC2, 4)
chain(AC0, WA, 4)
chain(AC1, WB, 4)
A(f"ds_write_b128 {vPW}, {vq(AC2)} offset:2048")
A(f"ds_write_b128 {vPW}, {vq(AC0)}")
A(f"ds_write_b128 {vPW}, {vq(AC1)} offset:1024")
A("s_waitcnt lgkmcnt(0)")
A.label(lg)
A("s_barrier")
lgf = A.newlabel("L_ngf")
role_w0(lgf)
R = WK
rd4(R + 16, vFS1, 0)
rd4(R + 20, vFS2, 0)
rd4(R, vFG, 0)
rd4(R + 4, vFG, 4)
rd4(R + 8, vFCG, 0)
rd4(R + 12, vFCG, 4)
A("s_waitcnt lgkmcnt(8)")
sum4(f"v{R+24}", R + 16)
sum4(f"v{R+25}", R + 20)
ln_stats(f"v{R+24}", f"v{R+25}")
A("s_waitcnt lgkmcnt(0)")
sum4(f"v{R+26}", R)
sum4(f"v{R+27}", R + 4)
sum4(f"v{R+28}", R + 8)
sum4(f"v{R+29}", R + 12)
A(f"v_fma_f32 v{R+26}, -v{R+24}, v{R+28}, v{R+26}")
A(f"v_fma_f32 v{R+27}, -v{R+24}, v{R+29}, v{R+27}")
A(f"v_mul_f32 v{R+26}, v{R+26}, v{R+25}")
A(f"v_mul_f32 v{R+27}, v{R+27}, v{R+25}")
A(f"v_mul_f32 v{R+26}, {sNLOG2E}, v{R+26}")
A(f"v_exp_f32 v{R+26}, v{R+26}")
A(f"v_add_f32 v{R+26}, 1.0, v{R+26}")
A(f"v_rcp_f32 v{R+26}, v{R+26}")
A(f"v_mul_f32 v{R+26}, v{R+26}, v{R+27}")
A(f"v_and_b32 {vT[1]}, 7, {vLANE}")
A(f"v_cmp_eq_u32 vcc, 7, {vT[1]}")
A(f"v_mov_b32 {vT[2]}, 0")
A(f"v_cndmask_b32 v{R+26}, v{R+26}, {vT[2]}, vcc")
A(f"v_mov_b32_dpp v{R+27}, v{R+26} quad_perm:[1,0,3,2] row_mask:0xf bank_mask:0xf")
A(f"v_cvt_pk_bf16_f32 {vT[1]}, v{R+26}, v{R+27}")
sanitize(vT[1])
A("s_mov_b32 exec_lo, 0x55555555")
A("s_mov_b32 exec_hi, 0x55555555")
group_store(f"buffer_store_dword {vT[1]}, {vHST}, {srd(S_G)}, {sOH} offen")
A("s_mov_b64 exec, -1")
ts(14, True)
A.label(lgf)
ld0 = A.newlabel("L_nd0")
role_compute(ld0)
init_ones(2)
wread(WA, vWOWN, W_D, 2)
A.label(ld0)
A("s_barrier")
if STOP == "h":
    A("s_branch L_FIN")
ld = A.newlabel("L_nd")
role_compute(ld)
xpoll(vHOFF, sOH, 2, SL_H)
A("s_waitcnt lgkmcnt(0)")
ts(15, True)
chain(AC0, WA, 2)
A(f"ds_write_b128 {vPW}, {vq(AC0)}")
A("s_waitcnt lgkmcnt(0)")
A.label(ld)
A("s_barrier")
ldf = A.newlabel("L_ndf")
role_w0(ldf)
finalize_partial_and_ar(sOAR2, 16)
llast = A.newlabel("L_last"); ldf2 = A.newlabel("L_ndf2")
A(f"s_cmp_eq_u32 {sL}, 1")
A(f"s_cbranch_scc1 {llast}")
A(f"s_mov_b32 {sT0}, {hex(G_XA + 0x2000)}")
group_store(f"buffer_store_dword {vT[1]}, {vXST}, {srd(S_G)}, {sT0} offen")
A(f"s_branch {ldf2}")
A.label(llast)
make_srd(S_T, P_OUT, size=8192)
A(f"v_lshrrev_b32 {vT[2]}, 3, {vLANE}")
A(f"v_cmp_eq_u32 vcc, {sG}, {vT[2]}")
A("s_and_saveexec_b64 s[84:85], vcc")
A(f"buffer_store_dword {vT[1]}, {vXNAT}, {srd(S_T)}, 0 offen")
A("s_mov_b64 exec, s[84:85]")
A.label(ldf2)
ts(17, True)
A.label(ldf)
A(f"s_cmp_eq_u32 {sL}, 1")
A("s_cbranch_scc1 L_FIN")
A("s_barrier")
if STOP == "x2":
    A("s_branch L_FIN")
A(f"s_mov_b32 {sL}, 1")
A(f"s_mov_b32 {sOXA}, {hex(G_XA + 0x2000)}")
A(f"s_mov_b32 {sOQ}, {hex(G_Q + 0x2000)}")
A("s_branch L_LAYER")

A.label("L_FIN")
if PROFILE:
    ts(30)
    ts(31)
    make_srd(S_T, P_WS, off_imm=TS_BASE, size=0x100000)
    A(f"s_lshl_b32 {sT0}, s2, 3")
    A(f"s_add_u32 {sT0}, {sT0}, {sW}")
    A(f"s_lshl_b32 {sT0}, {sT0}, 8")
    A(f"v_lshl_add_u32 {vT[0]}, {vLANE}, 2, {sT0}")
    A(f"buffer_store_dword {vTS}, {vT[0]}, {srd(S_T)}, 0 offen")
A("s_waitcnt vmcnt(0)")
A.label("L_END")
A("s_endpgm")
A('.section .rodata,"a"')
A(".p2align 6")
A(f".amdhsa_kernel {KN}")
A("  .amdhsa_next_free_vgpr 256")
A("  .amdhsa_next_free_sgpr 96")
A("  .amdhsa_accum_offset 256")
A("  .amdhsa_group_segment_fixed_size 0")
A("  .amdhsa_kernarg_size 96")
A("  .amdhsa_user_sgpr_count 2")
A("  .amdhsa_user_sgpr_kernarg_segment_ptr 1")
A("  .amdhsa_system_sgpr_workgroup_id_x 1")
A(".end_amdhsa_kernel")

print("\n".join(A.finalize()))
```

```python
import sys
from asmlib import Asm

opts = dict(a.split("=") for a in sys.argv[1:] if "=" in a)


def opt(name, default):
    return int(opts.get(name, str(default)))


PROFILE = opt("prof", 0)
STOP = opts.get("stop", "")
DLY_AR = opt("dlyar", 4)
FORCE_SLOW = opt("slow", 0)
PREWARM = opt("prewarm", 0)
DK = opt("dk", 4)
DV = opt("dv", 5)
D0 = opt("d0", 8)
BACKOFF = opt("backoff", 0)
ARR_SLEEP = opt("arr", 8)
WNT = " nt" if opt("wnt", 0) else ""
HQ = opt("hq", 6)
HF = opt("hf", 6)
GI = opt("gi", 19)
AGAP = opt("agap", 2)
GGAP = opt("ggap", 4)
NPF = opt("npf", 3)
PFNT = " nt" if opt("pfnt", 0) else ""
PLAINCLR = opt("plainclr", 1)
KFIRST = opt("kfirst", 0)
Q1PLAIN = opt("q1plain", 0)
NOTRY = opt("notry", 0)
NOWQP = opt("nowqp", 0)
NOWQF = opt("nowqf", 0)
NOCLR = opt("noclr", 0)
NOWOPF = opt("nowopf", 0)
PI = opt("pi", 8)
PFSL = opt("pfsl", 4)
WOPF = opt("wopf", 22)
SL_Q, SL_ON, SL_X, SL_H = opt("slq", 0), opt("slon", 0), opt("slx", 0), opt("slh", 0)

KN = "interleave_layers__sliding_block_cached__glu_gated_glu__decode_kernel"
A = Asm()

WBASE, WSTR = 73728, 14336
W_WO, W_G, W_U, W_D = 0, 4096, 8192, 12288
XSTG = WBASE + 4096
WQI = 131072
QBUF = 147456
STAT = 148480
FLAG = 148736
PART = 149504
LDS_TOTAL = 161792

G_Q, G_XA, G_ON, G_H, G_OP = 0x0, 0x4000, 0xA000, 0xE000, 0x10000
G_ARR, G_ARR2 = 0x3E000, 0x3E400
G_Q0 = 0x38000
OPS = 2176
G_CLR0 = 0x0
AR_BASE = 0x200000
ARR_BASE = 0x300000
TS_BASE = 0x400000

sW, sG, sJ, sB, sS = "s3", "s4", "s5", "s6", "s7"
P_X, P_K, P_V, P_WQ, P_WO, P_WG, P_WU, P_WD, P_OUT, P_DBG, P_WS = 8, 10, 12, 14, 16, 20, 22, 24, 26, 28, 30
S_K, S_V, S_G, S_AR, S_T, S_T2 = 32, 36, 40, 44, 48, 52
sMODE, sL, sSPIN, sCW = "s56", "s57", "s58", "s59"
sTILE = [60, 61, 62, 63]
M_X, M_NX = "s[64:65]", "s[66:67]"
sC1, sINV512, sEPS, sNLOG2E = "s68", "s69", "s70", "s71"
sOQ, sOXA, sOOP, sOON, sOH, sOAR1, sOAR2, sOXO1 = ("s%d" % i for i in range(72, 80))
sNONCE, sDELTA, sINC, sM0SAVE = "s80", "s81", "s82", "s83"
sQDONE = "s72"
sT0, sT1, sT2, sT3, sT4, sSTG = ("s%d" % i for i in range(84, 90))
sTS = "s[90:91]"


def srd(n):
    return f"s[{n}:{n+3}]"


vLANE = "v1"
vXOFF, vHOFF, vQOFF, vOPW, vOPR0, vXNAT, vOPS, vPW, vWOWN, vWQ = ("v%d" % i for i in range(2, 12))
vFA, vAST, vALD, vXST, vXO0, vXO1 = ("v%d" % i for i in range(12, 18))
vH1a, vH1b, vH1sa, vH1sb, vONS = ("v%d" % i for i in range(18, 23))
vFS1, vFS2, vFC, vFG, vFCG, vHST = ("v%d" % i for i in range(23, 29))
vSTW, vSTR = "v29", "v30"
vTS = "v31"
vKq = ["v32", "v33", "v34", "v35"]
vVq = ["v36", "v37"]
vKr = ["v38", "v39", "v40", "v41"]
vVr0 = "v42"
vSENT = "v43"
vT = ["v%d" % i for i in range(44, 54)]
vQST, vX0R = "v54", "v55"
ONES = 56
DUMMY = 60
KREG, VREG = 64, 128
WK = 192


def vq(n, c=4):
    return f"v[{n}:{n+c-1}]"


def ts(idx, layer=False):
    if not PROFILE:
        return
    A("s_waitcnt lgkmcnt(0)")
    A("s_mov_b32 s93, m0")
    A("s_mov_b32 m0, s92")
    A("s_nop 3")
    A(f"v_writelane_b32 {vTS}, s90, m0")
    A("s_mov_b32 m0, s93")
    A(f"s_memrealtime {sTS}")
    if layer:
        A(f"s_lshl_b32 s92, {sL}, 5")
        A(f"s_add_u32 s92, s92, {idx}")
    else:
        A(f"s_mov_b32 s92, {idx}")


def make_srd(dst, ptr, off_sgpr=None, size=None, off_imm=None):
    if off_sgpr is not None:
        A(f"s_add_u32 s{dst}, s{ptr}, {off_sgpr}")
        A(f"s_addc_u32 s{dst+1}, s{ptr+1}, 0")
    elif off_imm is not None:
        A(f"s_add_u32 s{dst}, s{ptr}, {hex(off_imm)}")
        A(f"s_addc_u32 s{dst+1}, s{ptr+1}, 0")
    else:
        A(f"s_mov_b32 s{dst}, s{ptr}")
        A(f"s_mov_b32 s{dst+1}, s{ptr+1}")
    A(f"s_mov_b32 s{dst+2}, {hex(size) if isinstance(size, int) else size}")
    A(f"s_mov_b32 s{dst+3}, 0x20000")


def group_store(instr_plain):
    lf = A.newlabel("L_gsf")
    le = A.newlabel("L_gse")
    A(f"s_cmp_eq_u32 {sMODE}, 1")
    A(f"s_cbranch_scc1 {lf}")
    A(instr_plain + " sc1")
    A(f"s_branch {le}")
    A.label(lf)
    A(instr_plain)
    A.label(le)


def sanitize(v):
    A(f"v_min_u32 {v}, {vSENT}, {v}")


def max_tree(regs, dst):
    regs = list(regs)
    A(f"v_max3_u32 {dst}, v{regs[0]}, v{regs[1]}, v{regs[2]}")
    i = 3
    while i < len(regs):
        if i + 1 < len(regs):
            A(f"v_max3_u32 {dst}, {dst}, v{regs[i]}, v{regs[i+1]}")
            i += 2
        else:
            A(f"v_max_u32 {dst}, {dst}, v{regs[i]}")
            i += 1


def poll(issue, regs, pre_sleep=0):
    lp = A.newlabel("L_poll")
    if pre_sleep:
        A(f"s_sleep {pre_sleep}")
    A.label(lp)
    issue()
    A(f"s_sub_u32 {sSPIN}, {sSPIN}, 1")
    A("s_cbranch_scc1 L_END")
    A("s_waitcnt vmcnt(0)")
    max_tree(regs, vT[0])
    A(f"v_cmp_eq_u32 vcc, -1, {vT[0]}")
    if BACKOFF:
        lo = A.newlabel("L_pok")
        A(f"s_cbranch_vccz {lo}")
        A(f"s_sleep {BACKOFF}")
        A(f"s_branch {lp}")
        A.label(lo)
    else:
        A(f"s_cbranch_vccnz {lp}")


def lds_spin(off, val, label):
    A(f"v_mov_b32 {vT[4]}, {FLAG}")
    A.label(label)
    A(f"ds_read_b32 {vT[5]}, {vT[4]} offset:{off}")
    A(f"s_sub_u32 {sSPIN}, {sSPIN}, 1")
    A("s_cbranch_scc1 L_END")
    A("s_waitcnt lgkmcnt(0)")
    A(f"v_cmp_ne_u32 vcc, {val}, {vT[5]}")
    lo = A.newlabel("L_spin_ok")
    A(f"s_cbranch_vccz {lo}")
    A("s_sleep 1")
    A(f"s_branch {label}")
    A.label(lo)


def lds_inc(off):
    A(f"v_mov_b32 {vT[4]}, {FLAG}")
    A(f"v_mov_b32 {vT[5]}, 1")
    A("s_mov_b64 exec, 1")
    A(f"ds_add_u32 {vT[4]}, {vT[5]} offset:{off}")
    A("s_mov_b64 exec, -1")


def role_compute(lskip):
    A(f"s_cmp_lt_u32 {sW}, 4")
    A(f"s_cbranch_scc1 {lskip}")


def role_w0(lskip):
    A(f"s_cmp_eq_u32 {sW}, 0")
    A(f"s_cbranch_scc0 {lskip}")


XR = WK
WA = WK + 16
WB = WK + 32
AC0, AC1, AC2 = WK + 48, WK + 52, WK + 56


def init_ones(nq):
    A(f"s_mov_b64 exec, {M_NX}")
    for i in range(4 * nq):
        A(f"v_mov_b32 v{XR+i}, v{ONES}")
    A("s_mov_b64 exec, -1")


def wread(base_reg, addr, off, nsteps):
    for t in range(nsteps):
        A(f"ds_read_b64_tr_b16 v[{base_reg+4*t}:{base_reg+4*t+1}], {addr} offset:{off + t*1024}")
        A(f"ds_read_b64_tr_b16 v[{base_reg+4*t+2}:{base_reg+4*t+3}], {addr} offset:{off + t*1024 + 128}")


def xpoll(voff, soff, nq, pre_sleep=0):
    def issue():
        A(f"s_mov_b64 exec, {M_X}")
        for i in range(nq):
            A(f"buffer_load_dwordx4 {vq(XR+4*i)}, {voff}, {srd(S_G)}, {soff} offen offset:{i*512} sc1")
        A("s_mov_b64 exec, -1")
    poll(issue, range(XR, XR + 4 * nq), pre_sleep)


def chain(acc, wreg, n):
    for i in range(n):
        c = "0" if i == 0 else vq(acc)
        A(f"v_mfma_f32_16x16x32_bf16 {vq(acc)}, {vq(XR+4*i)}, {vq(wreg+4*i)}, {c}")


def gram(acc, n):
    for i in range(n):
        c = "0" if i == 0 else vq(acc)
        A(f"v_mfma_f32_16x16x32_bf16 {vq(acc)}, {vq(XR+4*i)}, {vq(XR+4*i)}, {c}")


def rd4(dst, addr, off256):
    A(f"ds_read2st64_b32 v[{dst}:{dst+1}], {addr} offset0:{off256} offset1:{off256+12}")
    A(f"ds_read2st64_b32 v[{dst+2}:{dst+3}], {addr} offset0:{off256+24} offset1:{off256+36}")


def sum4(dst, src):
    A(f"v_add_f32 v{src}, v{src}, v{src+1}")
    A(f"v_add_f32 v{src+2}, v{src+2}, v{src+3}")
    A(f"v_add_f32 {dst}, v{src}, v{src+2}")


def ln_stats(s1, s2):
    A(f"v_mul_f32 {s1}, {sINV512}, {s1}")
    A(f"v_mul_f32 {s2}, {sINV512}, {s2}")
    A(f"v_fma_f32 {s2}, -{s1}, {s1}, {s2}")
    A(f"v_max_f32 {s2}, 0, {s2}")
    A(f"v_add_f32 {s2}, {sEPS}, {s2}")
    A(f"v_rsq_f32 {s2}, {s2}")


def q_partial_tail():
    chain(AC0, WA, 4)
    gram(AC2, 4)
    A(f"ds_write_b128 {vPW}, {vq(AC0)}")
    A(f"ds_write_b128 {vPW}, {vq(AC2)} offset:2048")
    A("s_waitcnt lgkmcnt(0)")


def q_finalize():
    R = WK
    A(f"v_add_u32 {vT[1]}, 16, {vFA}")
    A(f"v_add_u32 {vT[2]}, 16, {vFC}")
    rd4(R + 16, vFS1, 0)
    rd4(R + 20, vFS2, 0)
    rd4(R, vFA, 0)
    rd4(R + 4, vT[1], 0)
    rd4(R + 8, vFC, 0)
    rd4(R + 12, vT[2], 0)
    A("s_waitcnt lgkmcnt(8)")
    sum4(f"v{R+24}", R + 16)
    sum4(f"v{R+25}", R + 20)
    ln_stats(f"v{R+24}", f"v{R+25}")
    A("s_waitcnt lgkmcnt(0)")
    sum4(f"v{R+26}", R)
    sum4(f"v{R+27}", R + 4)
    sum4(f"v{R+28}", R + 8)
    sum4(f"v{R+29}", R + 12)
    A(f"v_fma_f32 v{R+26}, -v{R+24}, v{R+28}, v{R+26}")
    A(f"v_fma_f32 v{R+27}, -v{R+24}, v{R+29}, v{R+27}")
    A(f"v_mul_f32 v{R+26}, v{R+26}, v{R+25}")
    A(f"v_mul_f32 v{R+27}, v{R+27}, v{R+25}")
    A(f"v_cvt_pk_bf16_f32 {vT[1]}, v{R+26}, v{R+27}")


A(f"; @launch grid=(256,1,1) block=(512,1,1) lds={LDS_TOTAL}")
A('.amdgcn_target "amdgcn-amd-amdhsa--gfx950"')
A(".text")
A(f".globl {KN}")
A(".p2align 8")
A(f".type {KN},@function")
A(f"{KN}:")
A("s_cmp_ge_u32 s2, 256")
A("s_cbranch_scc1 L_END")
A("s_load_dwordx16 s[8:23], s[0:1], 0")
A("s_load_dwordx8 s[24:31], s[0:1], 64")
A("s_memrealtime s[94:95]")
A(f"v_and_b32 {vLANE}, 63, v0")
A(f"v_lshrrev_b32 {vT[0]}, 6, v0")
A(f"v_readfirstlane_b32 {sW}, {vT[0]}")
A(f"s_and_b32 {sG}, s2, 7")
A(f"s_lshr_b32 {sJ}, s2, 3")
A(f"s_lshr_b32 {sB}, {sJ}, 2")
A(f"s_and_b32 {sS}, {sJ}, 3")
if PROFILE:
    A(f"v_mov_b32 {vTS}, 0")
    A("s_mov_b32 s92, 63")
    A("s_mov_b32 s90, 0")
ts(0)
A(f"v_mov_b32 {vT[1]}, {FLAG}")
A(f"v_mov_b32 {vT[2]}, 0")
A(f"ds_write_b32 {vT[1]}, {vT[2]}")
A(f"ds_write_b32 {vT[1]}, {vT[2]} offset:4")
A(f"ds_write_b32 {vT[1]}, {vT[2]} offset:8")
A(f"ds_write_b32 {vT[1]}, {vT[2]} offset:12")
A(f"ds_write_b32 {vT[1]}, {vT[2]} offset:16")
vI, vSl = vT[3], vT[4]
A(f"v_and_b32 {vI}, 15, {vLANE}")
A(f"v_lshrrev_b32 {vSl}, 4, {vLANE}")
A(f"v_xor_b32 {vT[5]}, {vI}, {vSl}")
A(f"v_lshlrev_b32 {vT[5]}, 4, {vT[5]}")
A(f"v_lshl_add_u32 {vKq[0]}, {vSl}, 8, {vT[5]}")
for q in range(1, 4):
    A(f"v_xor_b32 {vKq[q]}, {q << 6}, {vKq[0]}")
A(f"v_lshlrev_b32 {vT[5]}, 1, {vSl}")
A(f"v_xor_b32 {vT[5]}, {vI}, {vT[5]}")
A(f"v_lshlrev_b32 {vT[5]}, 4, {vT[5]}")
A(f"v_lshl_add_u32 {vVq[0]}, {vSl}, 8, {vT[5]}")
A(f"v_xor_b32 {vVq[1]}, 0x80, {vVq[0]}")
A(f"v_xor_b32 {vT[8]}, {sW}, {vLANE}")
A(f"v_lshlrev_b32 {vT[8]}, 4, {vT[8]}")
A(f"v_lshrrev_b32 {vT[7]}, 1, {vLANE}")
A(f"v_and_b32 {vT[6]}, 1, {vLANE}")
A(f"v_lshlrev_b32 {vT[6]}, 4, {vT[6]}")
A(f"v_lshl_add_u32 {vT[7]}, {vT[7]}, 13, {vT[6]}")
A(f"s_add_u32 {sSTG}, {sW}, 1")
A(f"s_lshl_b32 {sSTG}, {sSTG}, 13")
A(f"s_cmp_eq_u32 {sW}, 0")
A(f"s_cselect_b32 {sSTG}, 0, {sSTG}")
A(f"s_lshl_b32 {sT0}, {sW}, 2")
A(f"s_add_u32 {sT0}, {sT0}, {sJ}")
for T in range(4):
    A(f"s_add_u32 s{sTILE[T]}, {sT0}, {T}")
    A(f"s_and_b32 s{sTILE[T]}, s{sTILE[T]}, 31")
    A(f"s_lshl_b32 s{sTILE[T]}, s{sTILE[T]}, 12")
A(f"s_lshl_b32 {sT2}, {sB}, 3")
A(f"s_add_u32 {sT2}, {sT2}, {sG}")
A(f"s_lshl_b32 {sT2}, {sT2}, 21")
A(f"s_lshl_b32 {sT1}, {sS}, 17")
A(f"s_add_u32 {sT2}, {sT2}, {sT1}")
A(f"s_add_u32 {sT2}, {sT2}, 0x180000")
A(f"s_lshl_b32 {sT0}, {sG}, 10")
A(f"s_lshl_b32 {sT1}, {sJ}, 5")
A(f"s_add_u32 {sT0}, {sT0}, {sT1}")
A(f"s_sub_u32 {sT1}, 0x400000, {sT0}")
A("s_waitcnt lgkmcnt(0)")
A("s_barrier")
make_srd(S_K, P_K, off_sgpr=sT2, size=0x20000)
make_srd(S_T, P_WQ, off_sgpr=sT0, size=sT1)
make_srd(S_T2, P_X, size=8192)
def startup_loads():
    A(f"s_lshl_b32 {sT1}, {sW}, 10")
    A(f"s_add_u32 m0, {sT1}, {XSTG}")
    A(f"buffer_load_dwordx4 {vT[8]}, {srd(S_T2)}, {sT1} offen lds")
    ts(18)
    A(f"s_lshl_b32 {sT0}, {sJ}, 4")
    A(f"s_lshl_b32 {sT1}, {sW}, 1")
    A(f"s_add_u32 {sT0}, {sT0}, {sT1}")
    A(f"s_lshl_b32 {sT0}, {sT0}, 13")
    A(f"s_lshl_b32 {sT1}, {sJ}, 5")
    A(f"s_sub_u32 {sT0}, {sT0}, {sT1}")
    A(f"v_lshlrev_b32 {vT[6]}, 4, {vLANE}")
    if not NOWQF:
        A(f"buffer_load_dwordx4 v[240:243], {vT[6]}, {srd(S_T)}, {sT0} offen{PFNT}")
        A(f"s_add_u32 {sT0}, {sT0}, 8192")
        A(f"buffer_load_dwordx4 v[240:243], {vT[6]}, {srd(S_T)}, {sT0} offen{PFNT}")
    ts(19)


def wq_pieces():
    A(f"s_lshl_b32 {sT0}, {sG}, 10")
    A(f"s_lshl_b32 {sT1}, {sJ}, 5")
    A(f"s_add_u32 {sT0}, {sT0}, {sT1}")
    A(f"s_sub_u32 {sT1}, 0x400000, {sT0}")
    make_srd(S_T, P_WQ, off_sgpr=sT0, size=sT1)
    A(f"v_lshrrev_b32 {vT[7]}, 1, {vLANE}")
    A(f"v_and_b32 {vT[6]}, 1, {vLANE}")
    A(f"v_lshlrev_b32 {vT[6]}, 4, {vT[6]}")
    A(f"v_lshl_add_u32 {vT[7]}, {vT[7]}, 13, {vT[6]}")
    A(f"s_lshl_b32 {sT0}, {sW}, 11")
    A(f"s_add_u32 m0, {sT0}, {WQI}")
    A(f"s_lshl_b32 {sT1}, {sW}, 19")
    A(f"buffer_load_dwordx4 {vT[7]}, {srd(S_T)}, {sT1} offen lds")
    A(f"s_add_u32 m0, {sT0}, {WQI + 1024}")
    A(f"s_add_u32 {sT1}, {sT1}, {32*8192}")
    A(f"buffer_load_dwordx4 {vT[7]}, {srd(S_T)}, {sT1} offen lds")


def wo_prefetch():
    A(f"s_lshl_b32 {sT0}, {sG}, 9")
    A(f"s_lshl_b32 {sT1}, {sJ}, 4")
    A(f"s_add_u32 {sT0}, {sT0}, {sT1}")
    A(f"s_lshl_b32 {sT1}, {sW}, 1")
    A(f"s_add_u32 {sT0}, {sT0}, {sT1}")
    A(f"s_lshl_b32 {sT0}, {sT0}, 10")
    make_srd(S_T, P_WO, size=0x400000)
    A(f"v_lshlrev_b32 {vT[6]}, 4, {vLANE}")
    A(f"buffer_load_dwordx4 {vq(DUMMY)}, {vT[6]}, {srd(S_T)}, {sT0} offen{PFNT}")
    A(f"buffer_load_dwordx4 {vq(DUMMY)}, {vT[6]}, {srd(S_T)}, {sT0} offen offset:1024{PFNT}")


ts(24)
if not KFIRST:
    startup_loads()


def kv_one(i, ring=2):
    n, q = i // 4, i % 4
    T = n % 4
    srdn, voffs = (S_K, vKq) if i < 16 else (S_V, vVq)
    if q == 0:
        A(f"s_add_u32 m0, {sSTG}, {(n % ring)*4096}")
    A(f"buffer_load_dwordx4 {voffs[q % len(voffs)]}, {srd(srdn)}, s{sTILE[T]} offen offset:{q*1024} nt lds")


def readout(n, ring=2):
    slot = (n % ring) * 4096
    if n < 4:
        for c in range(4):
            A(f"ds_read_b128 {vq(KREG + (4*n+c)*4)}, {vKr[c]} offset:{slot}")
    else:
        T = n - 4
        u, half = T >> 1, T & 1
        for dt in range(8):
            a_ = vT[4 + (dt & 1)]
            if dt == 0:
                a_ = vVr0
            else:
                A(f"v_xor_b32 {a_}, {dt << 5}, {vVr0}")
            r = VREG + (8 * u + dt) * 4 + 2 * half
            A(f"ds_read_b64_tr_b16 v[{r}:{r+1}], {a_} offset:{slot}")


FIRST = 4
for i in range(FIRST):
    kv_one(i)
ts(21)
if KFIRST:
    startup_loads()
make_srd(S_V, P_V, off_sgpr=sT2, size=0x20000)
A(f"s_lshl_b32 {sT0}, {sG}, 18")
make_srd(S_G, P_WS, off_sgpr=sT0, size=0x40000)
A(f"s_lshl_b32 {sT0}, {sJ}, 13")
A(f"s_add_u32 {sT0}, {sT0}, {hex(AR_BASE)}")
make_srd(S_AR, P_WS, off_sgpr=sT0, size=0xC2000)
A(f"s_mov_b32 {sSPIN}, 0x40000")
A("s_mov_b32 s64, 0x00ff00ff")
A("s_mov_b32 s65, 0x00ff00ff")
A("s_mov_b32 s66, 0xff00ff00")
A("s_mov_b32 s67, 0xff00ff00")
A(f"s_sub_u32 {sCW}, {sW}, 4")
A("v_mov_b32 v250, 0")
A(f"v_lshlrev_b32 v252, 4, {vLANE}")
lw0 = A.newlabel("L_pre0"); lpe = A.newlabel("L_pree")
A(f"s_cmp_eq_u32 {sW}, 0")
A(f"s_cbranch_scc1 {lw0}")
for i in range(4):
    A(f"v_mov_b32 v{DUMMY+i}, -1")
A(f"s_mul_i32 {sT0}, {sJ}, 7168")
A(f"s_lshl_b32 {sT1}, {sW}, 10")
A(f"s_add_u32 {sT0}, {sT0}, {sT1}")
A(f"s_add_u32 {sT0}, {sT0}, {G_CLR0 - 1024}")
A(f"v_lshl_add_u32 {vT[5]}, {vLANE}, 4, {sT0}")
if not NOCLR:
    A(f"buffer_store_dwordx4 {vq(DUMMY)}, {vT[5]}, {srd(S_G)}, 0 offen" + ("" if PLAINCLR else " sc1"))
lpf = A.newlabel("L_pf")
A(f"s_cmp_eq_u32 {sW}, 1")
A(f"s_cbranch_scc1 {lpf}")
A(f"s_branch {lpe}")
A.label(lpf)
A("s_getpc_b64 s[84:85]")
A(f"v_lshlrev_b32 {vT[8]}, 6, {vLANE}")
for i in range(NPF):
    A(f"global_load_dword {vT[9]}, {vT[8]}, s[84:85]")
    A("s_add_u32 s84, s84, 4096")
    A("s_addc_u32 s85, s85, 0")
A(f"s_branch {lpe}")
A.label(lw0)
make_srd(S_T, P_DBG, size=256)
lnl = A.newlabel("L_nolead")
A("s_cmp_eq_u32 s2, 0")
A(f"s_cbranch_scc0 {lnl}")
A("s_lshl_b32 s94, s94, 4")
A("s_or_b32 s94, s94, 0x80000000")
A("v_mov_b32 v251, s94")
A("s_mov_b64 exec, 1")
A(f"buffer_store_dword v251, v250, {srd(S_T)}, 0 offen sc1")
A("s_mov_b64 exec, -1")
A.label(lnl)
A(f"v_lshrrev_b32 {vT[8]}, 3, {vLANE}")
A(f"v_and_b32 {vT[9]}, 7, {vLANE}")
A(f"v_lshlrev_b32 {vT[9]}, 2, {vT[9]}")
A(f"v_lshl_add_u32 {vXNAT}, {vT[8]}, 10, {vT[9]}")
A(f"s_lshl_b32 {sT0}, {sJ}, 5")
A(f"v_add_u32 {vXNAT}, {sT0}, {vXNAT}")
A(f"buffer_load_dword {vXO0}, {vXNAT}, {srd(S_T2)}, 0 offen")
A.label(lpe)
ts(25)

A(f"v_and_b32 {vI}, 15, {vLANE}")
A(f"v_lshrrev_b32 {vSl}, 4, {vLANE}")
A(f"s_mov_b32 {sC1}, 0x3e0293ee")
A(f"s_mov_b32 {sINV512}, 0x3b000000")
A(f"s_mov_b32 {sEPS}, 0x3727c5ac")
A(f"s_mov_b32 {sNLOG2E}, 0xbfb8aa3b")
A(f"v_mov_b32 {vSENT}, -2")
for i in range(4):
    A(f"v_mov_b32 v{ONES+i}, 0x3f803f80")
A(f"v_xor_b32 {vT[5]}, {vI}, {vSl}")
A(f"v_lshlrev_b32 {vT[5]}, 4, {vT[5]}")
A(f"v_lshl_add_u32 {vT[5]}, {vI}, 8, {vT[5]}")
A(f"v_add_u32 {vKr[0]}, {sSTG}, {vT[5]}")
for c in range(1, 4):
    A(f"v_xor_b32 {vKr[c]}, {c << 6}, {vKr[0]}")
A(f"v_lshrrev_b32 {vT[5]}, 2, {vI}")
A(f"v_lshl_add_u32 {vT[5]}, {vSl}, 2, {vT[5]}")
A(f"v_and_b32 {vT[6]}, 7, {vT[5]}")
A(f"v_lshlrev_b32 {vT[6]}, 5, {vT[6]}")
A(f"v_lshl_add_u32 {vT[6]}, {vT[5]}, 8, {vT[6]}")
A(f"v_and_b32 {vT[7]}, 3, {vLANE}")
A(f"v_lshl_add_u32 {vT[6]}, {vT[7]}, 3, {vT[6]}")
A(f"v_add_u32 {vVr0}, {sSTG}, {vT[6]}")
A(f"s_lshl_b32 {sT0}, {sB}, 10")
A(f"v_lshlrev_b32 {vT[5]}, 4, {vT[7]}")
A(f"v_lshl_add_u32 {vT[5]}, {vSl}, 6, {vT[5]}")
A(f"v_add_u32 {vQOFF}, {sT0}, {vT[5]}")
A(f"v_xor_b32 {vT[5]}, {vSl}, {vT[7]}")
A(f"v_lshlrev_b32 {vT[5]}, 4, {vT[5]}")
A(f"v_lshl_add_u32 {vT[5]}, {vT[7]}, 9, {vT[5]}")
A(f"v_lshrrev_b32 {vT[6]}, 2, {vI}")
A(f"v_lshl_add_u32 {vT[5]}, {vT[6]}, 6, {vT[5]}")
A(f"s_add_u32 {sT0}, {sW}, 1")
A(f"s_lshl_b32 {sT0}, {sT0}, 13")
A(f"v_add_u32 {vOPW}, {sT0}, {vT[5]}")
A(f"s_lshr_b32 {sT0}, {sW}, 1")
A(f"s_lshl_b32 {sT1}, {sT0}, 9")
A(f"s_and_b32 {sT2}, {sW}, 1")
A(f"s_lshl_b32 {sT2}, {sT2}, 8")
A(f"s_add_u32 {sT1}, {sT1}, {sT2}")
A(f"v_lshrrev_b32 {vT[5]}, 2, {vLANE}")
A(f"v_and_b32 {vT[5]}, 3, {vT[5]}")
A(f"v_xor_b32 {vT[5]}, {sT0}, {vT[5]}")
A(f"v_lshlrev_b32 {vT[5]}, 4, {vT[5]}")
A(f"v_lshrrev_b32 {vT[6]}, 4, {vLANE}")
A(f"v_lshl_add_u32 {vT[5]}, {vT[6]}, 6, {vT[5]}")
A(f"v_and_b32 {vT[6]}, 3, {vLANE}")
A(f"v_lshl_add_u32 {vT[5]}, {vT[6]}, 2, {vT[5]}")
A(f"s_add_u32 {sT1}, {sT1}, 8192")
A(f"v_add_u32 {vOPR0}, {sT1}, {vT[5]}")
A(f"s_mul_i32 {sT1}, {sJ}, {OPS}")
A(f"s_lshl_b32 {sT2}, {sW}, 8")
A(f"s_add_u32 {sT1}, {sT1}, {sT2}")
A(f"v_lshl_add_u32 {vOPS}, {vLANE}, 2, {sT1}")
A(f"s_lshl_b32 {sT1}, {sW}, 5")
A(f"s_add_u32 {sT1}, {sT1}, {STAT}")
A(f"v_lshl_add_u32 {vSTW}, {vT[7]}, 3, {sT1}")
A(f"s_lshl_b32 {sT0}, {sT0}, 3")
A(f"s_add_u32 {sT0}, {sT0}, {STAT}")
A(f"v_mov_b32 {vSTR}, {sT0}")
A(f"v_lshlrev_b32 {vT[5]}, 4, {vI}")
A(f"v_lshl_add_u32 {vT[5]}, {vSl}, 7, {vT[5]}")
A(f"s_lshl_b32 {sT0}, {sCW}, 11")
A(f"v_add_u32 {vXOFF}, {sT0}, {vT[5]}")
A(f"s_lshl_b32 {sT0}, {sCW}, 10")
A(f"v_add_u32 {vHOFF}, {sT0}, {vT[5]}")
A(f"s_mul_i32 {sT0}, {sCW}, 3072")
A(f"s_add_u32 {sT0}, {sT0}, {PART}")
A(f"v_lshl_add_u32 {vPW}, {vLANE}, 4, {sT0}")
A(f"v_and_b32 {vT[8]}, 3, {vI}")
A(f"v_xor_b32 {vT[8]}, {vSl}, {vT[8]}")
A(f"v_lshlrev_b32 {vT[8]}, 4, {vT[8]}")
A(f"v_and_b32 {vT[6]}, 4, {vI}")
A(f"v_lshl_add_u32 {vT[8]}, {vT[6]}, 4, {vT[8]}")
A(f"v_and_b32 {vT[6]}, 7, {vI}")
A(f"v_lshl_add_u32 {vT[8]}, {vT[6]}, 10, {vT[8]}")
A(f"s_lshl_b32 {sT0}, {sCW}, 8")
A(f"v_xor_b32 {vX0R}, {sT0}, {vT[8]}")
A(f"v_lshrrev_b32 {vT[5]}, 2, {vI}")
A(f"v_lshl_add_u32 {vT[5]}, {vSl}, 3, {vT[5]}")
A(f"v_lshlrev_b32 {vT[5]}, 5, {vT[5]}")
A(f"v_and_b32 {vT[6]}, 3, {vLANE}")
A(f"v_lshl_add_u32 {vT[5]}, {vT[6]}, 3, {vT[5]}")
A(f"s_mul_i32 {sT0}, {sCW}, {WSTR}")
A(f"s_add_u32 {sT0}, {sT0}, {WBASE}")
A(f"v_add_u32 {vWOWN}, {sT0}, {vT[5]}")
A(f"s_lshl_b32 {sT0}, {sCW}, 12")
A(f"s_add_u32 {sT0}, {sT0}, {WQI}")
A(f"v_add_u32 {vWQ}, {sT0}, {vT[5]}")
vBb, vNp = vT[5], vT[6]
A(f"v_lshrrev_b32 {vBb}, 3, {vLANE}")
A(f"v_and_b32 {vNp}, 7, {vLANE}")
A(f"v_lshrrev_b32 {vT[7]}, 2, {vBb}")
A(f"v_lshlrev_b32 {vT[7]}, 8, {vT[7]}")
A(f"v_and_b32 {vT[8]}, 3, {vBb}")
A(f"v_lshl_add_u32 {vT[7]}, {vT[8]}, 2, {vT[7]}")
A(f"v_add_u32 {vT[7]}, {PART}, {vT[7]}")
A(f"v_lshl_add_u32 {vFA}, {vNp}, 5, {vT[7]}")
A(f"v_add_u32 {vFS1}, {2048 + 8*16}, {vT[7]}")
A(f"v_lshl_add_u32 {vFS2}, {vBb}, 4, {vT[7]}")
A(f"v_add_u32 {vFS2}, 2048, {vFS2}")
A(f"v_lshlrev_b32 {vT[8]}, 5, {vNp}")
A(f"v_add_u32 {vFC}, {PART + 32*16}, {vT[8]}")
A(f"s_lshl_b32 {sT0}, {sG}, 5")
A(f"s_add_u32 {sT0}, {sT0}, {sJ}")
A(f"s_mul_i32 {sT0}, {sT0}, 14")
A(f"s_and_b32 {sDELTA}, {sT0}, 15")
A(f"s_lshr_b32 {sDELTA}, {sDELTA}, 1")
A(f"v_add_u32 {vT[8]}, {sDELTA}, {vNp}")
A(f"v_lshl_add_u32 {vFG}, {vT[8]}, 4, {vT[7]}")
A(f"v_lshlrev_b32 {vT[8]}, 4, {vT[8]}")
A(f"v_add_u32 {vFCG}, {PART + 32*16}, {vT[8]}")
A(f"v_lshlrev_b32 {vALD}, 3, {vLANE}")
A(f"s_lshl_b32 {sT0}, {sG}, 10")
A(f"v_lshl_add_u32 {vAST}, {vLANE}, 4, {sT0}")
A(f"v_and_b32 {vT[8]}, 3, {vNp}")
A(f"v_lshlrev_b32 {vT[8]}, 2, {vT[8]}")
A(f"v_lshl_add_u32 {vT[8]}, {vBb}, 4, {vT[8]}")
A(f"v_lshrrev_b32 {vT[9]}, 2, {vNp}")
A(f"v_lshl_add_u32 {vXST}, {vT[9]}, 7, {vT[8]}")
A(f"s_lshl_b32 {sT0}, {sJ}, 8")
A(f"v_add_u32 {vXST}, {sT0}, {vXST}")
A(f"v_lshlrev_b32 {vT[8]}, 2, {vNp}")
A(f"v_lshl_add_u32 {vT[8]}, {vBb}, 10, {vT[8]}")
A(f"s_lshl_b32 {sT0}, {sJ}, 5")
A(f"v_add_u32 {vXNAT}, {sT0}, {vT[8]}")
A(f"s_and_b32 {sT0}, {sJ}, 7")
A(f"s_lshr_b32 {sT1}, {sT0}, 1")
A(f"s_lshl_b32 {sT1}, {sT1}, 8")
A(f"s_and_b32 {sT0}, {sJ}, 1")
A(f"s_lshl_b32 {sT0}, {sT0}, 7")
A(f"s_add_u32 {sT1}, {sT1}, {sT0}")
A(f"s_lshr_b32 {sT0}, {sJ}, 3")
A(f"s_lshl_b32 {sT0}, {sT0}, 4")
A(f"s_add_u32 {sT1}, {sT1}, {sT0}")
A(f"v_and_b32 {vT[8]}, 3, {vNp}")
A(f"v_lshlrev_b32 {vT[8]}, 2, {vT[8]}")
A(f"v_lshl_add_u32 {vT[8]}, {vT[9]}, 6, {vT[8]}")
A(f"v_lshl_add_u32 {vT[8]}, {vBb}, 10, {vT[8]}")
A(f"v_add_u32 {vQST}, {sT1}, {vT[8]}")
A(f"v_lshrrev_b32 {vT[8]}, 1, {vNp}")
A(f"v_lshlrev_b32 {vT[8]}, 2, {vT[8]}")
A(f"v_lshl_add_u32 {vT[8]}, {vBb}, 4, {vT[8]}")
A(f"s_lshl_b32 {sT0}, {sJ}, 7")
A(f"v_add_u32 {vHST}, {sT0}, {vT[8]}")
A(f"s_mul_i32 {sT0}, {sB}, {4*OPS}")
A(f"s_lshl_b32 {sT1}, {sS}, 9")
A(f"s_add_u32 {sT1}, {sT1}, {sT0}")
A(f"v_add_u32 {vH1a}, {sT1}, {vALD}")
A(f"v_add_u32 {vH1b}, {2*OPS}, {vH1a}")
A(f"s_lshl_b32 {sT1}, {sS}, 3")
A(f"s_add_u32 {sT1}, {sT1}, {sT0}")
A(f"s_add_u32 {sT1}, {sT1}, 2048")
A(f"v_mov_b32 {vH1sa}, {sT1}")
A(f"v_add_u32 {vH1sb}, {2*OPS}, {vH1sa}")
A(f"s_lshl_b32 {sT0}, {sB}, 4")
A(f"s_lshl_b32 {sT1}, {sS}, 11")
A(f"s_add_u32 {sT0}, {sT0}, {sT1}")
A(f"v_and_b32 {vT[8]}, 3, {vLANE}")
A(f"v_lshlrev_b32 {vT[8]}, 2, {vT[8]}")
A(f"v_lshrrev_b32 {vT[9]}, 2, {vLANE}")
A(f"v_lshl_add_u32 {vT[8]}, {vT[9]}, 7, {vT[8]}")
A(f"v_add_u32 {vONS}, {sT0}, {vT[8]}")


def hook_nonce_issue():
    make_srd(S_T, P_DBG, size=256)
    A("s_mov_b64 exec, 1")
    A(f"buffer_load_dword v251, v250, {srd(S_T)}, 0 offen sc1")
    A("s_mov_b64 exec, -1")


def nonce_check():
    ln = A.newlabel("L_nonce"); lk = A.newlabel("L_nonce_ok")
    A.label(ln)
    A(f"v_readfirstlane_b32 {sNONCE}, v251")
    A(f"s_cmp_lg_u32 {sNONCE}, 0")
    A(f"s_cbranch_scc1 {lk}")
    A("s_sleep 4")
    make_srd(S_T, P_DBG, size=256)
    A("s_mov_b64 exec, 1")
    A(f"buffer_load_dword v251, v250, {srd(S_T)}, 0 offen sc1")
    A("s_mov_b64 exec, -1")
    A(f"s_sub_u32 {sSPIN}, {sSPIN}, 1")
    A("s_cbranch_scc1 L_END")
    A("s_waitcnt vmcnt(0)")
    A(f"s_branch {ln}")
    A.label(lk)


def hook_arrive():
    nonce_check()
    lab = A.newlabel("L_cBw")
    lds_spin(12, 8, lab)
    A("s_getreg_b32 s84, hwreg(HW_REG_XCC_ID, 0, 4)")
    if FORCE_SLOW:
        A(f"s_lshr_b32 {sT1}, {sJ}, 4")
        A(f"s_xor_b32 {sT0}, {sT0}, {sT1}")
    A(f"s_or_b32 {sINC}, {sT0}, {sNONCE}")
    A(f"v_mov_b32 {vT[9]}, {sINC}")
    A(f"s_lshl_b32 {sT0}, {sJ}, 4")
    A(f"v_mov_b32 {vT[8]}, {sT0}")
    A(f"s_mov_b32 {sT1}, {hex(G_ARR)}")
    A("s_mov_b64 exec, 1")
    A(f"buffer_store_dword {vT[9]}, {vT[8]}, {srd(S_G)}, {sT1} offen")
    A("s_mov_b64 exec, -1")
    ts(28)


def arr_issue(base):
    A(f"s_mov_b32 {sT1}, {hex(base)}")
    A("s_mov_b32 exec_lo, -1")
    A("s_mov_b32 exec_hi, 0")
    A(f"buffer_load_dword v253, v252, {srd(S_G)}, {sT1} offen sc1")
    A("s_mov_b64 exec, -1")


def hook_poll():
    A(f"v_lshlrev_b32 v252, 4, {vLANE}")
    arr_issue(G_ARR)


def hook_check():
    A(f"s_mov_b32 {sT2}, 3000")
    A.label("L_ARR")
    A("s_mov_b32 exec_lo, -1")
    A("s_mov_b32 exec_hi, 0")
    A(f"v_xor_b32 {vT[6]}, {sNONCE}, v253")
    A(f"v_cmp_lt_u32 vcc, 15, {vT[6]}")
    A("s_mov_b64 exec, -1")
    A("s_cbranch_vccz L_ARR_OK")
    A(f"s_sub_u32 {sT2}, {sT2}, 1")
    A("s_cbranch_scc1 L_ARR_SLOW")
    A(f"s_sleep {ARR_SLEEP}")
    arr_issue(G_ARR)
    A("s_waitcnt vmcnt(0)")
    A("s_branch L_ARR")
    A.label("L_ARR_OK")
    A("s_mov_b32 exec_lo, -1")
    A("s_mov_b32 exec_hi, 0")
    A(f"v_cmp_ne_u32 vcc, {sINC}, v253")
    A("s_mov_b64 exec, -1")
    A(f"s_mov_b32 {sMODE}, 1")
    A("s_cbranch_vccz L_MODE_OK")
    A.label("L_ARR_SLOW")
    A(f"s_mov_b32 {sMODE}, 2")
    A("buffer_wbl2 sc1")
    A("s_waitcnt vmcnt(0)")
    A(f"v_mov_b32 {vT[9]}, {sNONCE}")
    A(f"s_lshl_b32 {sT0}, {sJ}, 4")
    A(f"v_mov_b32 {vT[8]}, {sT0}")
    A(f"s_mov_b32 {sT1}, {hex(G_ARR2)}")
    A("s_mov_b64 exec, 1")
    A(f"buffer_store_dword {vT[9]}, {vT[8]}, {srd(S_G)}, {sT1} offen sc1")
    A("s_mov_b64 exec, -1")
    A.label("L_ARR2")
    arr_issue(G_ARR2)
    A(f"s_sub_u32 {sSPIN}, {sSPIN}, 1")
    A("s_cbranch_scc1 L_END")
    A("s_waitcnt vmcnt(0)")
    A("s_mov_b32 exec_lo, -1")
    A("s_mov_b32 exec_hi, 0")
    A(f"v_cmp_ne_u32 vcc, {sNONCE}, v253")
    A("s_mov_b64 exec, -1")
    A("s_cbranch_vccnz L_ARR2")
    A.label("L_MODE_OK")
    A(f"v_mov_b32 {vT[6]}, {FLAG}")
    A(f"v_mov_b32 {vT[7]}, {sMODE}")
    A(f"ds_write_b32 {vT[6]}, {vT[7]}")
    ts(27)


def hook_q1_final():
    lab = A.newlabel("L_c1w")
    lds_spin(4, 8, lab)
    ts(1)
    vI_, vS_ = vT[3], vT[4]
    A(f"v_and_b32 {vI_}, 15, {vLANE}")
    A(f"v_lshrrev_b32 {vS_}, 4, {vLANE}")
    A(f"s_mov_b64 exec, {M_NX}")
    for t in range(64):
        A(f"v_mov_b32 v{VREG+t}, v{ONES}")
    A(f"s_mov_b64 exec, {M_X}")
    A(f"s_lshl_b32 {sT0}, {sCW}, 8")
    A(f"v_xor_b32 {vT[8]}, {sT0}, {vX0R}")
    for t in range(16):
        a_ = vT[5 + (t & 1)]
        A(f"v_xor_b32 {a_}, {t*64}, {vT[8]}")
        A(f"v_add_u32 {a_}, {XSTG}, {a_}")
        A(f"ds_read_b128 {vq(VREG+4*t)}, {a_}")
    A("s_mov_b64 exec, -1")
    A(f"s_lshl_b32 {sT0}, {sCW}, 12")
    A(f"v_subrev_u32 {vT[9]}, {sT0}, {vWQ}")
    D0_, G0_, W0_ = WK, WK + 4, WK + 16
    for hf in range(2):
        for t in range(8):
            tt = 8 * hf + t
            A(f"ds_read_b64_tr_b16 v[{W0_+4*t}:{W0_+4*t+1}], {vT[9]} offset:{tt*1024}")
            A(f"ds_read_b64_tr_b16 v[{W0_+4*t+2}:{W0_+4*t+3}], {vT[9]} offset:{tt*1024+128}")
        A("s_waitcnt lgkmcnt(0)")
        for t in range(8):
            tt = 8 * hf + t
            c_d = "0" if tt == 0 else vq(D0_)
            c_g = "0" if tt == 0 else vq(G0_)
            A(f"v_mfma_f32_16x16x32_bf16 {vq(D0_)}, {vq(VREG+4*tt)}, {vq(W0_+4*t)}, {c_d}")
            A(f"v_mfma_f32_16x16x32_bf16 {vq(G0_)}, {vq(VREG+4*tt)}, {vq(VREG+4*tt)}, {c_g}")
        if hf == 0:
            A("s_nop 7")
    S1, S2, QV, CS, CT = WK + 8, WK + 12, WK + 48, WK + 52, WK + 53
    for r in range(4):
        A(f"v_mov_b32_dpp v{S1+r}, v{G0_+r} row_newbcast:8 row_mask:0xf bank_mask:0xf")
    for r in range(4):
        A(f"v_mov_b32_dpp v{S2+r}, v{G0_+r} row_newbcast:{r} row_mask:0xd bank_mask:0xf")
        A(f"v_mov_b32_dpp v{S2+r}, v{G0_+r} row_newbcast:{4+r} row_mask:0x2 bank_mask:0xf")
    A(f"v_mov_b32 v{CT}, v{D0_}")
    A(f"v_mov_b32 v{CS}, 0")
    A(f"v_permlane32_swap_b32 v{CT}, v{CS}")
    for r in range(4):
        A(f"v_mul_f32 v{S1+r}, {sINV512}, v{S1+r}")
        A(f"v_mul_f32 v{S2+r}, {sINV512}, v{S2+r}")
        A(f"v_fma_f32 v{S2+r}, -v{S1+r}, v{S1+r}, v{S2+r}")
        A(f"v_max_f32 v{S2+r}, 0, v{S2+r}")
        A(f"v_add_f32 v{S2+r}, {sEPS}, v{S2+r}")
        A(f"v_rsq_f32 v{S2+r}, v{S2+r}")
        A(f"v_fma_f32 v{QV+r}, -v{S1+r}, v{CS}, v{D0_+r}")
        A(f"v_mul_f32 v{QV+r}, v{QV+r}, v{S2+r}")
    for r in range(4):
        A(f"v_mov_b32_dpp v{S1+r}, v{QV+r} quad_perm:[1,0,3,2] row_mask:0xf bank_mask:0xf")
    for r in range(4):
        A(f"v_cvt_pk_bf16_f32 v{W0_+2*r}, v{QV+r}, v{S1+r}")
        A(f"v_mov_b32 v{W0_+2*r+1}, {sNONCE}")
    A(f"v_lshrrev_b32 {vT[9]}, 1, {vI_}")
    A(f"v_lshlrev_b32 {vT[9]}, 3, {vT[9]}")
    A(f"v_lshl_add_u32 {vT[9]}, {vS_}, 8, {vT[9]}")
    A(f"s_lshl_b32 {sT0}, {sJ}, 9")
    A(f"s_add_u32 {sT0}, {sT0}, {hex(G_Q0)}")
    A("s_mov_b32 exec_lo, 0x55555555")
    A("s_mov_b32 exec_hi, 0")
    for r in range(4):
        A(f"buffer_store_dwordx2 v[{W0_+2*r}:{W0_+2*r+1}], {vT[9]}, {srd(S_G)}, {sT0} offen offset:{r*64} sc1")
    A("s_mov_b64 exec, -1")
    A(f"v_and_b32 {vXO1}, 0xffff0000, {vXO0}")
    A(f"v_lshlrev_b32 {vXO0}, 16, {vXO0}")
    ts(2)


def gather_issue():
    A(f"v_lshrrev_b32 v248, 1, {vLANE}")
    A(f"v_lshlrev_b32 v248, 9, v248")
    A(f"v_and_b32 v249, 1, {vLANE}")
    A(f"v_lshl_add_u32 v248, v249, 5, v248")
    A(f"s_lshl_b32 {sT0}, {sB}, 6")
    A(f"s_add_u32 {sT0}, {sT0}, {hex(G_Q0)}")
    A(f"buffer_load_dwordx4 v[240:243], v248, {srd(S_G)}, {sT0} offen sc1")
    A(f"buffer_load_dwordx4 v[244:247], v248, {srd(S_G)}, {sT0} offen offset:16 sc1")


def gather_test(lfail):
    A(f"v_xor_b32 {vT[6]}, {sNONCE}, v241")
    A(f"v_xor_b32 {vT[7]}, {sNONCE}, v243")
    A(f"v_xor_b32 {vT[8]}, {sNONCE}, v245")
    A(f"v_xor_b32 {vT[9]}, {sNONCE}, v247")
    A(f"v_or3_b32 {vT[6]}, {vT[6]}, {vT[7]}, {vT[8]}")
    A(f"v_or_b32 {vT[6]}, {vT[6]}, {vT[9]}")
    A(f"v_cmp_ne_u32 vcc, 0, {vT[6]}")
    A(f"s_cbranch_vccnz {lfail}")


def gather_commit():
    A("v_mov_b32 v241, v242")
    A("v_mov_b32 v242, v244")
    A("v_mov_b32 v243, v246")
    A(f"v_lshrrev_b32 v248, 2, {vLANE}")
    A(f"v_and_b32 v248, 3, v248")
    A(f"v_lshlrev_b32 v248, 8, v248")
    A(f"v_and_b32 v249, 3, {vLANE}")
    A(f"v_lshl_add_u32 v248, v249, 6, v248")
    A(f"v_lshrrev_b32 v249, 4, {vLANE}")
    A(f"v_lshl_add_u32 v248, v249, 4, v248")
    A(f"v_add_u32 v248, {QBUF}, v248")
    A("ds_write_b128 v248, v[240:243]")
    A("s_waitcnt lgkmcnt(0)")
    A(f"v_mov_b32 v248, {FLAG}")
    A("v_mov_b32 v249, 1")
    A("ds_write_b32 v248, v249 offset:16")
    A(f"s_mov_b32 {sQDONE}, 1")
    ts(3)


def hook_gather_try():
    lf = A.newlabel("L_gt_f"); le = A.newlabel("L_gt_e")
    A(f"s_cmp_eq_u32 {sQDONE}, 1")
    A(f"s_cbranch_scc1 {le}")
    gather_test(lf)
    gather_commit()
    A(f"s_branch {le}")
    A.label(lf)
    gather_issue()
    A.label(le)


def gather_final():
    lp = A.newlabel("L_gq"); lf = A.newlabel("L_gq_f"); le = A.newlabel("L_gq_e")
    A(f"s_cmp_eq_u32 {sQDONE}, 1")
    A(f"s_cbranch_scc1 {le}")
    A.label(lp)
    A("s_waitcnt vmcnt(0)")
    gather_test(lf)
    gather_commit()
    A(f"s_branch {le}")
    A.label(lf)
    gather_issue()
    A(f"s_sub_u32 {sSPIN}, {sSPIN}, 1")
    A("s_cbranch_scc1 L_END")
    A(f"s_branch {lp}")
    A.label(le)


def stream(Dsched, hooks, cnt_at, ring=2, wopf=True):
    done = set()
    cntA_at = PI + Dsched(PI)
    for i in range(FIRST, 32):
        D = Dsched(i)
        if i >= D:
            A(f"s_waitcnt vmcnt({D-1})")
        for n in range(8):
            if n not in done and 4 * n + 3 <= i - D:
                readout(n, ring)
                done.add(n)
        if i >= 4 * ring and i % 4 == 0:
            assert (i // 4 - ring) in done, (i, D, ring)
            A("s_waitcnt lgkmcnt(0)")
        if i == PI and not NOWQP:
            A(f"s_mov_b32 {sM0SAVE}, m0")
            wq_pieces()
            A(f"s_mov_b32 m0, {sM0SAVE}")
        if i == cntA_at:
            lds_inc(4)
            ts(29)
        if i == cnt_at:
            lds_inc(12)
        if i in hooks:
            A(f"s_mov_b32 {sM0SAVE}, m0")
            hooks[i]()
            A(f"s_mov_b32 m0, {sM0SAVE}")
        kv_one(i, ring)
        if i == 15:
            ts(26)
    if wopf:
        wo_prefetch()
    for n in range(4, 8 if ring == 4 else 7):
        if n not in done:
            A(f"s_waitcnt vmcnt({31 - (4*n+3) + (2 if wopf else 0)})")
            readout(n, ring)


A(f"s_cmp_eq_u32 {sW}, 0")
A("s_cbranch_scc0 L_NOTW0")
AI = FIRST + D0 + 2
QF = max(PI + D0 + 1, AI + 1)
GI2 = QF + GGAP
PA = opt("pa", 31 - D0)
A(f"s_mov_b32 {sQDONE}, 0")
w0hooks = {FIRST: hook_nonce_issue, AI: hook_arrive, QF: hook_q1_final}
gi = GI2
w0hooks[gi] = gather_issue
while gi + D0 <= 31:
    w0hooks[gi + D0] = hook_gather_try
    gi += D0
PAI = next(i for i in range(QF + 2, 31) if i not in w0hooks and (i + D0) not in w0hooks and i + D0 <= 31)
w0hooks[PAI] = hook_poll
w0hooks[PAI + D0] = hook_check
stream(lambda i: D0, w0hooks, FIRST + D0, ring=4, wopf=False)
gather_final()
wo_prefetch()
A("s_branch L_STRM_DONE")
A.label("L_NOTW0")
A(f"s_cmp_lt_u32 {sW}, 4")
A("s_cbranch_scc0 L_CSTREAM")
stream(lambda i: DK if i < 16 else DV, {}, FIRST + DK)
if PREWARM:
    A(f"v_mov_b32 {vT[5]}, {FLAG}")
    A.label("L_fw")
    A(f"ds_read_b32 {vT[6]}, {vT[5]}")
    A(f"s_sub_u32 {sSPIN}, {sSPIN}, 1")
    A("s_cbranch_scc1 L_END")
    A("s_waitcnt lgkmcnt(0)")
    A(f"v_cmp_eq_u32 vcc, 0, {vT[6]}")
    A("s_cbranch_vccnz L_fw")
    A(f"s_mul_i32 {sT0}, {sJ}, 7168")
    A(f"s_add_u32 {sT0}, {sT0}, {G_CLR0}")
    A(f"s_sub_u32 {sT1}, {sW}, 1")
    A(f"s_mul_i32 {sT1}, {sT1}, 3072")
    A(f"s_add_u32 {sT0}, {sT0}, {sT1}")
    A(f"v_lshl_add_u32 {vT[5]}, {vLANE}, 4, {sT0}")
    for i in range(3):
        A(f"buffer_load_dwordx4 {vq(DUMMY)}, {vT[5]}, {srd(S_G)}, 0 offen offset:{i*1024} sc1")
A("s_branch L_STRM_DONE")
A.label("L_CSTREAM")
stream(lambda i: DK if i < 16 else DV, {}, FIRST + DK)
A.label("L_STRM_DONE")
ts(4)
lds_spin(16, 1, "L_QRDY")
A(f"v_and_b32 {vT[7]}, 3, {vLANE}")
A(f"v_lshlrev_b32 {vT[7]}, 4, {vT[7]}")
A(f"v_lshrrev_b32 {vT[8]}, 4, {vLANE}")
A(f"v_lshl_add_u32 {vT[7]}, {vT[8]}, 6, {vT[7]}")
A(f"v_add_u32 {vT[7]}, {QBUF}, {vT[7]}")
QOP = WK
for c in range(4):
    A(f"ds_read_b128 {vq(QOP+4*c)}, {vT[7]} offset:{c*256}")
A("s_waitcnt lgkmcnt(0)")
A(f"s_mov_b32 {sL}, 0")
ts(5)
A("s_branch L_ATT")


def finalize_partial_and_ar(soff_ar, tsb):
    R = WK
    A(f"v_add_u32 {vT[1]}, 16, {vFA}")
    rd4(R, vFA, 0)
    rd4(R + 4, vT[1], 0)
    A(f"v_mov_b32 v{R+9}, {sNONCE}")
    A(f"v_mov_b32 v{R+11}, {sNONCE}")
    A(f"v_lshlrev_b32 {vT[2]}, 4, {vLANE}")
    A(f"v_add_u32 {vT[3]}, 4096, {vT[2]}")
    A("s_waitcnt lgkmcnt(0)")
    sum4(f"v{R+8}", R)
    sum4(f"v{R+10}", R + 4)
    A(f"buffer_store_dwordx4 v[{R+8}:{R+11}], {vAST}, {srd(S_AR)}, {soff_ar} offen sc1")
    ts(tsb, True)
    Q = R + 12
    lp = A.newlabel("L_arp")
    if DLY_AR:
        A(f"s_sleep {DLY_AR}")
    A.label(lp)
    for gg in range(8):
        A(f"buffer_load_dwordx4 {vq(Q+4*gg)}, {vT[2 + (gg >> 2)]}, {srd(S_AR)}, {soff_ar} offen offset:{(gg & 3)*1024} sc1")
    A(f"s_sub_u32 {sSPIN}, {sSPIN}, 1")
    A("s_cbranch_scc1 L_END")
    A("s_waitcnt vmcnt(0)")
    tags = [Q + 4 * gg + k for gg in range(8) for k in (1, 3)]
    A(f"v_min3_u32 {vT[5]}, v{tags[0]}, v{tags[1]}, v{tags[2]}")
    A(f"v_max3_u32 {vT[6]}, v{tags[0]}, v{tags[1]}, v{tags[2]}")
    i = 3
    while i < 16:
        if i + 1 < 16:
            A(f"v_min3_u32 {vT[5]}, {vT[5]}, v{tags[i]}, v{tags[i+1]}")
            A(f"v_max3_u32 {vT[6]}, {vT[6]}, v{tags[i]}, v{tags[i+1]}")
            i += 2
        else:
            A(f"v_min_u32 {vT[5]}, {vT[5]}, v{tags[i]}")
            A(f"v_max_u32 {vT[6]}, {vT[6]}, v{tags[i]}")
            i += 1
    A(f"v_xor_b32 {vT[5]}, {sNONCE}, {vT[5]}")
    A(f"v_xor_b32 {vT[6]}, {sNONCE}, {vT[6]}")
    A(f"v_or_b32 {vT[5]}, {vT[5]}, {vT[6]}")
    A(f"v_cmp_ne_u32 vcc, 0, {vT[5]}")
    A(f"s_cbranch_vccnz {lp}")
    B = R + 44
    for k in (0, 1):
        A(f"v_add_f32 v{B+k}, v{Q+2*k}, v{Q+4+2*k}")
        A(f"v_add_f32 v{B+2+k}, v{Q+8+2*k}, v{Q+12+2*k}")
        A(f"v_add_f32 v{B+4+k}, v{Q+16+2*k}, v{Q+20+2*k}")
        A(f"v_add_f32 v{B+6+k}, v{Q+24+2*k}, v{Q+28+2*k}")
    for k in (0, 1):
        A(f"v_add_f32 v{B+k}, v{B+k}, v{B+2+k}")
        A(f"v_add_f32 v{B+4+k}, v{B+4+k}, v{B+6+k}")
    for k in (0, 1):
        A(f"v_add_f32 v{B+k}, v{B+k}, v{B+4+k}")
    A(f"v_cvt_pk_bf16_f32 {vT[1]}, v{B}, v{B+1}")
    A(f"v_lshlrev_b32 v{B}, 16, {vT[1]}")
    A(f"v_and_b32 v{B+1}, 0xffff0000, {vT[1]}")
    A(f"v_add_f32 v{B}, v{B}, {vXO0}")
    A(f"v_add_f32 v{B+1}, v{B+1}, {vXO1}")
    A(f"v_cvt_pk_bf16_f32 {vT[1]}, v{B}, v{B+1}")
    A(f"v_lshlrev_b32 {vXO0}, 16, {vT[1]}")
    A(f"v_and_b32 {vXO1}, 0xffff0000, {vT[1]}")
    sanitize(vT[1])


A.label("L_LAYER")
lq = A.newlabel("L_q_nc")
role_compute(lq)
init_ones(4)
wread(WA, vWQ, 0, 4)
xpoll(vXOFF, sOXA, 4, SL_X)
A("s_waitcnt lgkmcnt(0)")
ts(20, True)
q_partial_tail()
A.label(lq)
A("s_barrier")
lq2 = A.newlabel("L_q_nf")
role_w0(lq2)
q_finalize()
sanitize(vT[1])
group_store(f"buffer_store_dword {vT[1]}, {vQST}, {srd(S_G)}, {sOQ} offen")
ts(21, True)
A.label(lq2)
for i in range(16):
    A(f"v_mov_b32 v{QOP+i}, 0")
A("s_barrier")


def qissue():
    A("s_mov_b32 exec_lo, 0x000f000f")
    A("s_mov_b32 exec_hi, 0x000f000f")
    for c in range(4):
        A(f"buffer_load_dwordx4 {vq(QOP+4*c)}, {vQOFF}, {srd(S_G)}, {sOQ} offen offset:{c*256} sc1")
    A("s_mov_b64 exec, -1")


poll(qissue, range(QOP, QOP + 16), SL_Q)
ts(22, True)

A.label("L_ATT")
A(f"s_lshl_b32 {sT0}, {sL}, 13")
A(f"s_add_u32 {sOON}, {sT0}, {hex(G_ON)}")
A(f"s_lshl_b32 {sT1}, {sL}, 14")
A(f"s_add_u32 {sOXO1}, {sT1}, {hex(G_XA)}")
A(f"s_mul_i32 {sT1}, {sL}, {32*OPS}")
A(f"s_add_u32 {sOOP}, {sT1}, {hex(G_OP)}")
A(f"s_lshl_b32 {sT1}, {sL}, 12")
A(f"s_add_u32 {sOH}, {sT1}, {hex(G_H)}")
A(f"s_lshl_b32 {sOAR1}, {sL}, 19")
A(f"s_add_u32 {sOAR2}, {sOAR1}, 0x40000")
SC = WK + 36
PQ = WK + 52
OA = WK
LA = WK + 32
for T in range(4):
    for c in range(4):
        cc = "0" if c == 0 else vq(SC + 4 * T)
        A(f"v_mfma_f32_16x16x32_bf16 {vq(SC+4*T)}, {vq(KREG+(4*T+c)*4)}, {vq(QOP+4*c)}, {cc}")
m0, m1 = vT[0], vT[1]
A(f"v_max3_f32 {m0}, v{SC}, v{SC+1}, v{SC+2}")
A(f"v_max3_f32 {m1}, v{SC+4}, v{SC+5}, v{SC+6}")
A(f"v_max3_f32 {m0}, {m0}, v{SC+3}, v{SC+7}")
A(f"v_max3_f32 {m1}, {m1}, v{SC+8}, v{SC+9}")
A(f"v_max3_f32 {m0}, {m0}, v{SC+10}, v{SC+11}")
A(f"v_max3_f32 {m1}, {m1}, v{SC+12}, v{SC+13}")
A(f"v_max3_f32 {m0}, {m0}, v{SC+14}, v{SC+15}")
A(f"v_max_f32 {m0}, {m0}, {m1}")
A(f"v_mov_b32 {m1}, {m0}")
A(f"v_permlane32_swap_b32 {m0}, {m1}")
A(f"v_max_f32 {m0}, {m0}, {m1}")
A(f"v_mov_b32 {m1}, {m0}")
A(f"v_permlane16_swap_b32 {m0}, {m1}")
A(f"v_max_f32 {m0}, {m0}, {m1}")
MP = vT[2]
A(f"v_mul_f32 {MP}, {sC1}, {m0}")
for i in range(16):
    A(f"v_fma_f32 v{SC+i}, v{SC+i}, {sC1}, -{MP}")
for i in range(16):
    A(f"v_exp_f32 v{SC+i}, v{SC+i}")
for u in range(2):
    for k in range(4):
        A(f"v_cvt_pk_bf16_f32 v{PQ+4*u+k}, v{SC+8*u+2*k}, v{SC+8*u+2*k+1}")
ts(6, True)


def v_stage():
    l = A.newlabel("L_vs")
    A(f"s_cmp_eq_u32 {sL}, 0")
    A(f"s_cbranch_scc0 {l}")
    A(f"s_cmp_eq_u32 {sW}, 0")
    A(f"s_cbranch_scc1 {l}")
    A("s_waitcnt vmcnt(2)")
    readout(7)
    A("s_waitcnt lgkmcnt(0)")
    A.label(l)


for u in range(2):
    if u == 1:
        v_stage()
    for dt in range(8):
        cc = "0" if u == 0 else vq(OA + 4 * dt)
        A(f"v_mfma_f32_16x16x32_bf16 {vq(OA+4*dt)}, {vq(VREG+(8*u+dt)*4)}, {vq(PQ+4*u)}, {cc}")
    cc = "0" if u == 0 else vq(LA)
    A(f"v_mfma_f32_16x16x32_bf16 {vq(LA)}, {vq(ONES)}, {vq(PQ+4*u)}, {cc}")
ts(7, True)
for half in range(2):
    for cg in range(1, 4):
        for r in range(4):
            A(f"v_mov_b32_dpp v{OA+16*half+r}, v{OA+16*half+4*cg+r} row_shr:{4*cg} row_mask:0xf bank_mask:{hex(1 << cg)}")
    A(f"ds_write_b128 {vOPW}, {vq(OA+16*half)} offset:{half*256}")
A("s_mov_b64 exec, 0xf")
A(f"v_mov_b32 {vT[4]}, {MP}")
A(f"v_mov_b32 {vT[5]}, v{LA}")
A(f"ds_write_b64 {vSTW}, v[48:49]")
A("s_mov_b64 exec, -1")
A("s_waitcnt lgkmcnt(0)")
A("s_barrier")
A(f"v_mov_b32 {vT[6]}, {FLAG}")
A(f"ds_read_b32 {vT[7]}, {vT[6]}")
R = WK
for w in range(8):
    A(f"ds_read_b64 v[{R+8+2*w}:{R+9+2*w}], {vSTR} offset:{w*32}")
for w in range(8):
    A(f"ds_read_b32 v{R+w}, {vOPR0} offset:{w*8192}")
A("s_waitcnt lgkmcnt(8)")
A(f"v_readfirstlane_b32 {sMODE}, {vT[7]}")
MM = vT[0]
A(f"v_max3_f32 {MM}, v{R+8}, v{R+10}, v{R+12}")
A(f"v_max3_f32 {MM}, {MM}, v{R+14}, v{R+16}")
A(f"v_max3_f32 {MM}, {MM}, v{R+18}, v{R+20}")
A(f"v_max_f32 {MM}, {MM}, v{R+22}")
for w in range(8):
    A(f"v_sub_f32 v{R+8+2*w}, v{R+8+2*w}, {MM}")
for w in range(8):
    A(f"v_exp_f32 v{R+8+2*w}, v{R+8+2*w}")
OO, LL = vT[4], vT[5]
A("s_waitcnt lgkmcnt(0)")
A(f"v_mul_f32 {OO}, v{R}, v{R+8}")
A(f"v_mul_f32 {LL}, v{R+9}, v{R+8}")
for w in range(1, 8):
    A(f"v_fmac_f32 {OO}, v{R+w}, v{R+8+2*w}")
    A(f"v_fmac_f32 {LL}, v{R+9+2*w}, v{R+8+2*w}")
sanitize(OO)
group_store(f"buffer_store_dword {OO}, {vOPS}, {srd(S_G)}, {sOOP} offen")
lst = A.newlabel("L_nst")
A(f"s_and_b32 {sT0}, {sW}, 1")
A(f"s_cmp_eq_u32 {sT0}, 0")
A(f"s_cbranch_scc0 {lst}")
A(f"v_min_u32 {vT[6]}, {vSENT}, {MM}")
A(f"v_min_u32 {vT[7]}, {vSENT}, {LL}")
A(f"s_mul_i32 {sT0}, {sJ}, {OPS}")
A(f"s_lshl_b32 {sT1}, {sW}, 2")
A(f"s_add_u32 {sT0}, {sT0}, {sT1}")
A(f"s_add_u32 {sT0}, {sT0}, 2048")
A(f"v_mov_b32 {vT[8]}, {sT0}")
A("s_mov_b64 exec, 1")
group_store(f"buffer_store_dwordx2 v[50:51], {vT[8]}, {srd(S_G)}, {sOOP} offen")
A("s_mov_b64 exec, -1")
A.label(lst)
ts(8, True)
lgu = A.newlabel("L_ngu")
A(f"s_cmp_eq_u32 {sL}, 0")
A(f"s_cbranch_scc0 {lgu}")
A(f"s_cmp_eq_u32 {sW}, 0")
A(f"s_cbranch_scc1 {lgu}")
lguc = A.newlabel("L_guc")
A(f"s_cmp_gt_u32 {sW}, 3")
A(f"s_cbranch_scc0 {lguc}")
A(f"s_lshl_b32 {sT0}, {sG}, 19")
A(f"s_lshl_b32 {sT1}, {sJ}, 5")
A(f"s_add_u32 {sT0}, {sT0}, {sT1}")
A(f"s_sub_u32 {sT1}, 0x400000, {sT0}")
make_srd(S_T, P_WO, off_sgpr=sT0, size=sT1)
A(f"v_lshrrev_b32 {vT[6]}, 1, {vLANE}")
A(f"v_and_b32 {vT[7]}, 1, {vLANE}")
A(f"v_lshlrev_b32 {vT[7]}, 4, {vT[7]}")
A(f"v_lshl_add_u32 {vT[6]}, {vT[6]}, 10, {vT[7]}")
A(f"s_lshl_b32 {sT0}, {sCW}, 17")
A(f"s_mul_i32 {sT2}, {sCW}, {WSTR}")
for i in range(4):
    A(f"s_add_u32 m0, {sT2}, {WBASE + W_WO + i*1024}")
    A(f"s_add_u32 {sT1}, {sT0}, {i*32*1024}")
    A(f"buffer_load_dwordx4 {vT[6]}, {srd(S_T)}, {sT1} offen{WNT} lds")
A(f"s_branch {lgu}")
A.label(lguc)
A(f"v_lshrrev_b32 {vT[4]}, 1, {vLANE}")
A(f"v_and_b32 {vT[5]}, 1, {vLANE}")
A(f"v_lshlrev_b32 {vT[5]}, 4, {vT[5]}")
ldn = A.newlabel("L_dn")
A(f"s_cmp_eq_u32 {sW}, 3")
A(f"s_cbranch_scc1 {ldn}")
A(f"s_lshl_b32 {sT0}, {sG}, 5")
A(f"s_add_u32 {sT0}, {sT0}, {sJ}")
A(f"s_mul_i32 {sT0}, {sT0}, 14")
A(f"s_and_b32 {sT0}, {sT0}, 0xfffffff0")
A(f"s_sub_u32 {sT1}, {512*3584}, {sT0}")
A(f"s_cmp_eq_u32 {sW}, 1")
A(f"s_cselect_b32 {sT2}, s{P_WG}, s{P_WU}")
A(f"s_cselect_b32 {sT3}, s{P_WG+1}, s{P_WU+1}")
A(f"s_cselect_b32 {sT4}, 0, {W_U - W_G}")
A(f"s_add_u32 s{S_T}, {sT2}, {sT0}")
A(f"s_addc_u32 s{S_T+1}, {sT3}, 0")
A(f"s_mov_b32 s{S_T+2}, {sT1}")
A(f"s_mov_b32 s{S_T+3}, 0x20000")
A(f"s_mov_b32 s{S_T2}, {sT2}")
A(f"s_mov_b32 s{S_T2+1}, {sT3}")
A(f"s_mov_b32 s{S_T2+2}, {512*3584}")
A(f"s_mov_b32 s{S_T2+3}, 0x20000")
A(f"v_lshrrev_b32 {vT[7]}, 5, {vLANE}")
A(f"v_mul_u32_u24 {vT[7]}, 3584, {vT[7]}")
A(f"v_and_b32 {vT[8]}, 31, {vLANE}")
A(f"v_lshl_add_u32 {vT[7]}, {vT[8]}, 4, {vT[7]}")
A(f"s_mul_i32 {sT0}, {sG}, 448")
A(f"s_and_b32 {sT0}, {sT0}, 0xffffff80")
A(f"s_mul_i32 {sT1}, {sJ}, {16*3584}")
A(f"s_add_u32 {sT0}, {sT0}, {sT1}")
for i in range(8):
    A(f"buffer_load_dwordx4 {vq(DUMMY)}, {vT[7]}, {srd(S_T2)}, {sT0} offen{PFNT}")
    if i < 7:
        A(f"s_add_u32 {sT0}, {sT0}, {2*3584}")
A(f"v_mul_u32_u24 {vT[6]}, 3584, {vT[4]}")
A(f"v_add_u32 {vT[6]}, {vT[6]}, {vT[5]}")
A("s_waitcnt vmcnt(0)")
A(f"s_sleep {PFSL}")
for cw in range(4):
    for i in range(4):
        A(f"s_add_u32 m0, {sT4}, {WBASE + W_G + cw*WSTR + i*1024}")
        A(f"s_mov_b32 {sT1}, {(128*cw + 32*i)*3584}")
        A(f"buffer_load_dwordx4 {vT[6]}, {srd(S_T)}, {sT1} offen{WNT} lds")
A(f"s_branch {lgu}")
A.label(ldn)
A(f"s_mul_i32 {sT0}, {sG}, {224*1024}")
A(f"s_lshl_b32 {sT1}, {sJ}, 5")
A(f"s_add_u32 {sT0}, {sT0}, {sT1}")
A(f"s_sub_u32 {sT1}, {1792*1024}, {sT0}")
make_srd(S_T, P_WD, off_sgpr=sT0, size=sT1)
make_srd(S_T2, P_WD, size=1792*1024)
A(f"s_mul_i32 {sT0}, {sG}, 224")
A(f"s_mul_i32 {sT1}, {sJ}, 7")
A(f"s_add_u32 {sT0}, {sT0}, {sT1}")
A(f"s_lshl_b32 {sT0}, {sT0}, 10")
A(f"v_lshlrev_b32 {vT[7]}, 4, {vLANE}")
for i in range(7):
    A(f"buffer_load_dwordx4 {vq(DUMMY)}, {vT[7]}, {srd(S_T2)}, {sT0} offen{PFNT}")
    if i < 6:
        A(f"s_add_u32 {sT0}, {sT0}, 1024")
A("s_waitcnt vmcnt(0)")
A(f"s_sleep {PFSL}")
A(f"v_lshrrev_b32 {vT[6]}, 3, {vT[4]}")
A(f"v_mul_u32_u24 {vT[6]}, 7, {vT[6]}")
A(f"v_and_b32 {vT[7]}, 7, {vT[4]}")
A(f"v_add_u32 {vT[6]}, {vT[6]}, {vT[7]}")
A(f"v_lshl_add_u32 {vT[6]}, {vT[6]}, 10, {vT[5]}")
A(f"v_mov_b32 {vT[8]}, 0x40000000")
A(f"v_cmp_eq_u32 vcc, 7, {vT[7]}")
A(f"v_cndmask_b32 {vT[6]}, {vT[6]}, {vT[8]}, vcc")
for cw in range(4):
    for i in range(2):
        A(f"s_mov_b32 m0, {WBASE + cw*WSTR + W_D + i*1024}")
        A(f"s_mov_b32 {sT1}, {(56*cw + 28*i)*1024}")
        A(f"buffer_load_dwordx4 {vT[6]}, {srd(S_T)}, {sT1} offen{WNT} lds")
A.label(lgu)
if STOP == "att":
    A("s_branch L_FIN")

lh1 = A.newlabel("L_nh1")
role_w0(lh1)
R = WK


def h1issue():
    A(f"buffer_load_dwordx2 v[{R}:{R+1}], {vH1a}, {srd(S_G)}, {sOOP} offen sc1")
    A(f"buffer_load_dwordx2 v[{R+2}:{R+3}], {vH1a}, {srd(S_G)}, {sOOP} offen offset:{OPS} sc1")
    A(f"buffer_load_dwordx2 v[{R+4}:{R+5}], {vH1b}, {srd(S_G)}, {sOOP} offen sc1")
    A(f"buffer_load_dwordx2 v[{R+6}:{R+7}], {vH1b}, {srd(S_G)}, {sOOP} offen offset:{OPS} sc1")
    A(f"buffer_load_dwordx2 v[{R+8}:{R+9}], {vH1sa}, {srd(S_G)}, {sOOP} offen sc1")
    A(f"buffer_load_dwordx2 v[{R+10}:{R+11}], {vH1sa}, {srd(S_G)}, {sOOP} offen offset:{OPS} sc1")
    A(f"buffer_load_dwordx2 v[{R+12}:{R+13}], {vH1sb}, {srd(S_G)}, {sOOP} offen sc1")
    A(f"buffer_load_dwordx2 v[{R+14}:{R+15}], {vH1sb}, {srd(S_G)}, {sOOP} offen offset:{OPS} sc1")


poll(h1issue, range(R, R + 16))
MM = vT[0]
A(f"v_max3_f32 {MM}, v{R+8}, v{R+10}, v{R+12}")
A(f"v_max_f32 {MM}, {MM}, v{R+14}")
for s in range(4):
    A(f"v_sub_f32 v{R+8+2*s}, v{R+8+2*s}, {MM}")
for s in range(4):
    A(f"v_exp_f32 v{R+8+2*s}, v{R+8+2*s}")
A(f"v_mul_f32 {vT[1]}, v{R+9}, v{R+8}")
A(f"v_mul_f32 {vT[2]}, v{R}, v{R+8}")
A(f"v_mul_f32 {vT[3]}, v{R+1}, v{R+8}")
for s in range(1, 4):
    A(f"v_fmac_f32 {vT[1]}, v{R+9+2*s}, v{R+8+2*s}")
    A(f"v_fmac_f32 {vT[2]}, v{R+2*s}, v{R+8+2*s}")
    A(f"v_fmac_f32 {vT[3]}, v{R+2*s+1}, v{R+8+2*s}")
A(f"v_rcp_f32 {vT[1]}, {vT[1]}")
A(f"v_mul_f32 {vT[2]}, {vT[2]}, {vT[1]}")
A(f"v_mul_f32 {vT[3]}, {vT[3]}, {vT[1]}")
A(f"v_cvt_pk_bf16_f32 {vT[2]}, {vT[2]}, {vT[3]}")
sanitize(vT[2])
group_store(f"buffer_store_dword {vT[2]}, {vONS}, {srd(S_G)}, {sOON} offen")
ts(9, True)
A.label(lh1)
lwo0 = A.newlabel("L_nwo0")
role_compute(lwo0)
init_ones(4)
A("s_waitcnt vmcnt(0)")
ts(23, True)
wread(WA, vWOWN, W_WO, 4)
A.label(lwo0)
A("s_barrier")
lwo = A.newlabel("L_nwo2")
role_compute(lwo)
xpoll(vXOFF, sOON, 4, SL_ON)
A("s_waitcnt lgkmcnt(0)")
ts(10, True)
chain(AC0, WA, 4)
A(f"ds_write_b128 {vPW}, {vq(AC0)}")
A("s_waitcnt lgkmcnt(0)")
A.label(lwo)
A("s_barrier")
lwf = A.newlabel("L_nwf")
role_w0(lwf)
finalize_partial_and_ar(sOAR1, 11)
group_store(f"buffer_store_dword {vT[1]}, {vXST}, {srd(S_G)}, {sOXO1} offen")
ts(12, True)
A.label(lwf)
lnw = A.newlabel("L_nwait")
A(f"s_cmp_eq_u32 {sW}, 0")
A(f"s_cbranch_scc1 {lnw}")
A("s_waitcnt vmcnt(0)")
A.label(lnw)
A("s_barrier")
if STOP == "x1":
    A("s_branch L_FIN")

lg = A.newlabel("L_ng")
role_compute(lg)
init_ones(4)
wread(WA, vWOWN, W_G, 4)
wread(WB, vWOWN, W_U, 4)
xpoll(vXOFF, sOXO1, 4, SL_X)
A("s_waitcnt lgkmcnt(0)")
ts(13, True)
gram(AC2, 4)
chain(AC0, WA, 4)
chain(AC1, WB, 4)
A(f"ds_write_b128 {vPW}, {vq(AC2)} offset:2048")
A(f"ds_write_b128 {vPW}, {vq(AC0)}")
A(f"ds_write_b128 {vPW}, {vq(AC1)} offset:1024")
A("s_waitcnt lgkmcnt(0)")
A.label(lg)
A("s_barrier")
lgf = A.newlabel("L_ngf")
role_w0(lgf)
R = WK
rd4(R + 16, vFS1, 0)
rd4(R + 20, vFS2, 0)
rd4(R, vFG, 0)
rd4(R + 4, vFG, 4)
rd4(R + 8, vFCG, 0)
rd4(R + 12, vFCG, 4)
A("s_waitcnt lgkmcnt(8)")
sum4(f"v{R+24}", R + 16)
sum4(f"v{R+25}", R + 20)
ln_stats(f"v{R+24}", f"v{R+25}")
A("s_waitcnt lgkmcnt(0)")
sum4(f"v{R+26}", R)
sum4(f"v{R+27}", R + 4)
sum4(f"v{R+28}", R + 8)
sum4(f"v{R+29}", R + 12)
A(f"v_fma_f32 v{R+26}, -v{R+24}, v{R+28}, v{R+26}")
A(f"v_fma_f32 v{R+27}, -v{R+24}, v{R+29}, v{R+27}")
A(f"v_mul_f32 v{R+26}, v{R+26}, v{R+25}")
A(f"v_mul_f32 v{R+27}, v{R+27}, v{R+25}")
A(f"v_mul_f32 v{R+26}, {sNLOG2E}, v{R+26}")
A(f"v_exp_f32 v{R+26}, v{R+26}")
A(f"v_add_f32 v{R+26}, 1.0, v{R+26}")
A(f"v_rcp_f32 v{R+26}, v{R+26}")
A(f"v_mul_f32 v{R+26}, v{R+26}, v{R+27}")
A(f"v_and_b32 {vT[1]}, 7, {vLANE}")
A(f"v_cmp_eq_u32 vcc, 7, {vT[1]}")
A(f"v_mov_b32 {vT[2]}, 0")
A(f"v_cndmask_b32 v{R+26}, v{R+26}, {vT[2]}, vcc")
A(f"v_mov_b32_dpp v{R+27}, v{R+26} quad_perm:[1,0,3,2] row_mask:0xf bank_mask:0xf")
A(f"v_cvt_pk_bf16_f32 {vT[1]}, v{R+26}, v{R+27}")
sanitize(vT[1])
A("s_mov_b32 exec_lo, 0x55555555")
A("s_mov_b32 exec_hi, 0x55555555")
group_store(f"buffer_store_dword {vT[1]}, {vHST}, {srd(S_G)}, {sOH} offen")
A("s_mov_b64 exec, -1")
ts(14, True)
A.label(lgf)
ld0 = A.newlabel("L_nd0")
role_compute(ld0)
init_ones(2)
wread(WA, vWOWN, W_D, 2)
A.label(ld0)
A("s_barrier")
if STOP == "h":
    A("s_branch L_FIN")
ld = A.newlabel("L_nd")
role_compute(ld)
xpoll(vHOFF, sOH, 2, SL_H)
A("s_waitcnt lgkmcnt(0)")
ts(15, True)
chain(AC0, WA, 2)
A(f"ds_write_b128 {vPW}, {vq(AC0)}")
A("s_waitcnt lgkmcnt(0)")
A.label(ld)
A("s_barrier")
ldf = A.newlabel("L_ndf")
role_w0(ldf)
finalize_partial_and_ar(sOAR2, 16)
llast = A.newlabel("L_last"); ldf2 = A.newlabel("L_ndf2")
A(f"s_cmp_eq_u32 {sL}, 1")
A(f"s_cbranch_scc1 {llast}")
A(f"s_mov_b32 {sT0}, {hex(G_XA + 0x2000)}")
group_store(f"buffer_store_dword {vT[1]}, {vXST}, {srd(S_G)}, {sT0} offen")
A(f"s_branch {ldf2}")
A.label(llast)
make_srd(S_T, P_OUT, size=8192)
A(f"v_lshrrev_b32 {vT[2]}, 3, {vLANE}")
A(f"v_cmp_eq_u32 vcc, {sG}, {vT[2]}")
A("s_and_saveexec_b64 s[84:85], vcc")
A(f"buffer_store_dword {vT[1]}, {vXNAT}, {srd(S_T)}, 0 offen")
A("s_mov_b64 exec, s[84:85]")
A.label(ldf2)
ts(17, True)
A.label(ldf)
A(f"s_cmp_eq_u32 {sL}, 1")
A("s_cbranch_scc1 L_FIN")
A("s_barrier")
if STOP == "x2":
    A("s_branch L_FIN")
A(f"s_mov_b32 {sL}, 1")
A(f"s_mov_b32 {sOXA}, {hex(G_XA + 0x2000)}")
A(f"s_mov_b32 {sOQ}, {hex(G_Q + 0x2000)}")
A("s_branch L_LAYER")

A.label("L_FIN")
if PROFILE:
    ts(30)
    ts(31)
    make_srd(S_T, P_WS, off_imm=TS_BASE, size=0x100000)
    A(f"s_lshl_b32 {sT0}, s2, 3")
    A(f"s_add_u32 {sT0}, {sT0}, {sW}")
    A(f"s_lshl_b32 {sT0}, {sT0}, 8")
    A(f"v_lshl_add_u32 {vT[0]}, {vLANE}, 2, {sT0}")
    A(f"buffer_store_dword {vTS}, {vT[0]}, {srd(S_T)}, 0 offen")
A("s_waitcnt vmcnt(0)")
A.label("L_END")
A("s_endpgm")
A('.section .rodata,"a"')
A(".p2align 6")
A(f".amdhsa_kernel {KN}")
A("  .amdhsa_next_free_vgpr 256")
A("  .amdhsa_next_free_sgpr 96")
A("  .amdhsa_accum_offset 256")
A("  .amdhsa_group_segment_fixed_size 0")
A("  .amdhsa_kernarg_size 96")
A("  .amdhsa_user_sgpr_count 2")
A("  .amdhsa_user_sgpr_kernarg_segment_ptr 1")
A("  .amdhsa_system_sgpr_workgroup_id_x 1")
A(".end_amdhsa_kernel")

print("\n".join(A.finalize()))
```

```python
import sys
from asmlib import Asm

opts = dict(a.split("=") for a in sys.argv[1:] if "=" in a)


def opt(name, default):
    return int(opts.get(name, str(default)))


PROFILE = opt("prof", 0)
STOP = opts.get("stop", "")
DLY_AR = opt("dlyar", 4)
FORCE_SLOW = opt("slow", 0)
PREWARM = opt("prewarm", 0)
DK = opt("dk", 4)
DV = opt("dv", 5)
D0 = opt("d0", 8)
BACKOFF = opt("backoff", 0)
ARR_SLEEP = opt("arr", 8)
WNT = " nt" if opt("wnt", 0) else ""
HQ = opt("hq", 6)
HF = opt("hf", 6)
GI = opt("gi", 19)
AGAP = opt("agap", 2)
GGAP = opt("ggap", 4)
NPF = opt("npf", 3)
PFNT = " nt" if opt("pfnt", 0) else ""
PLAINCLR = opt("plainclr", 1)
KFIRST = opt("kfirst", 0)
Q1PLAIN = opt("q1plain", 0)
NOTRY = opt("notry", 0)
DBGT = opt("dbgt", 0)
NOWQP = opt("nowqp", 0)
NOWQF = opt("nowqf", 0)
NOCLR = opt("noclr", 0)
NOWOPF = opt("nowopf", 0)
PI = opt("pi", 8)
PFSL = opt("pfsl", 4)
WOPF = opt("wopf", 22)
SL_Q, SL_ON, SL_X, SL_H = opt("slq", 0), opt("slon", 0), opt("slx", 0), opt("slh", 0)

KN = "interleave_layers__sliding_block_cached__glu_gated_glu__decode_kernel"
A = Asm()

WBASE, WSTR = 73728, 14336
W_WO, W_G, W_U, W_D = 0, 4096, 8192, 12288
XSTG = WBASE + 4096
WQI = 131072
QBUF = 147456
STAT = 148480
FLAG = 148736
PART = 149504
LDS_TOTAL = 161792

G_Q, G_XA, G_ON, G_H, G_OP = 0x0, 0x4000, 0xA000, 0xE000, 0x10000
G_ARR, G_ARR2 = 0x3E000, 0x3E400
G_Q0 = 0x38000
OPS = 2176
G_CLR0 = 0x0
AR_BASE = 0x200000
ARR_BASE = 0x300000
TS_BASE = 0x400000

sW, sG, sJ, sB, sS = "s3", "s4", "s5", "s6", "s7"
P_X, P_K, P_V, P_WQ, P_WO, P_WG, P_WU, P_WD, P_OUT, P_DBG, P_WS = 8, 10, 12, 14, 16, 20, 22, 24, 26, 28, 30
S_K, S_V, S_G, S_AR, S_T, S_T2 = 32, 36, 40, 44, 48, 52
sMODE, sL, sSPIN, sCW = "s56", "s57", "s58", "s59"
sTILE = [60, 61, 62, 63]
M_X, M_NX = "s[64:65]", "s[66:67]"
sC1, sINV512, sEPS, sNLOG2E = "s68", "s69", "s70", "s71"
sOQ, sOXA, sOOP, sOON, sOH, sOAR1, sOAR2, sOXO1 = ("s%d" % i for i in range(72, 80))
sNONCE, sDELTA, sINC, sM0SAVE = "s80", "s81", "s82", "s83"
sQDONE = "s72"
sT0, sT1, sT2, sT3, sT4, sSTG = ("s%d" % i for i in range(84, 90))
sTS = "s[90:91]"


def srd(n):
    return f"s[{n}:{n+3}]"


vLANE = "v1"
vXOFF, vHOFF, vQOFF, vOPW, vOPR0, vXNAT, vOPS, vPW, vWOWN, vWQ = ("v%d" % i for i in range(2, 12))
vFA, vAST, vALD, vXST, vXO0, vXO1 = ("v%d" % i for i in range(12, 18))
vH1a, vH1b, vH1sa, vH1sb, vONS = ("v%d" % i for i in range(18, 23))
vFS1, vFS2, vFC, vFG, vFCG, vHST = ("v%d" % i for i in range(23, 29))
vSTW, vSTR = "v29", "v30"
vTS = "v31"
vKq = ["v32", "v33", "v34", "v35"]
vVq = ["v36", "v37"]
vKr = ["v38", "v39", "v40", "v41"]
vVr0 = "v42"
vSENT = "v43"
vT = ["v%d" % i for i in range(44, 54)]
vQST, vX0R = "v54", "v55"
ONES = 56
DUMMY = 60
KREG, VREG = 64, 128
WK = 192


def vq(n, c=4):
    return f"v[{n}:{n+c-1}]"


def ts(idx, layer=False):
    if not PROFILE:
        return
    A("s_waitcnt lgkmcnt(0)")
    A("s_mov_b32 s93, m0")
    A("s_mov_b32 m0, s92")
    A("s_nop 3")
    A(f"v_writelane_b32 {vTS}, s90, m0")
    A("s_mov_b32 m0, s93")
    A(f"s_memrealtime {sTS}")
    if layer:
        A(f"s_lshl_b32 s92, {sL}, 5")
        A(f"s_add_u32 s92, s92, {idx}")
    else:
        A(f"s_mov_b32 s92, {idx}")


def make_srd(dst, ptr, off_sgpr=None, size=None, off_imm=None):
    if off_sgpr is not None:
        A(f"s_add_u32 s{dst}, s{ptr}, {off_sgpr}")
        A(f"s_addc_u32 s{dst+1}, s{ptr+1}, 0")
    elif off_imm is not None:
        A(f"s_add_u32 s{dst}, s{ptr}, {hex(off_imm)}")
        A(f"s_addc_u32 s{dst+1}, s{ptr+1}, 0")
    else:
        A(f"s_mov_b32 s{dst}, s{ptr}")
        A(f"s_mov_b32 s{dst+1}, s{ptr+1}")
    A(f"s_mov_b32 s{dst+2}, {hex(size) if isinstance(size, int) else size}")
    A(f"s_mov_b32 s{dst+3}, 0x20000")


def group_store(instr_plain):
    lf = A.newlabel("L_gsf")
    le = A.newlabel("L_gse")
    A(f"s_cmp_eq_u32 {sMODE}, 1")
    A(f"s_cbranch_scc1 {lf}")
    A(instr_plain + " sc1")
    A(f"s_branch {le}")
    A.label(lf)
    A(instr_plain)
    A.label(le)


def sanitize(v):
    A(f"v_min_u32 {v}, {vSENT}, {v}")


def max_tree(regs, dst):
    regs = list(regs)
    A(f"v_max3_u32 {dst}, v{regs[0]}, v{regs[1]}, v{regs[2]}")
    i = 3
    while i < len(regs):
        if i + 1 < len(regs):
            A(f"v_max3_u32 {dst}, {dst}, v{regs[i]}, v{regs[i+1]}")
            i += 2
        else:
            A(f"v_max_u32 {dst}, {dst}, v{regs[i]}")
            i += 1


def poll(issue, regs, pre_sleep=0):
    lp = A.newlabel("L_poll")
    if pre_sleep:
        A(f"s_sleep {pre_sleep}")
    A.label(lp)
    issue()
    A(f"s_sub_u32 {sSPIN}, {sSPIN}, 1")
    A("s_cbranch_scc1 L_END")
    A("s_waitcnt vmcnt(0)")
    max_tree(regs, vT[0])
    A(f"v_cmp_eq_u32 vcc, -1, {vT[0]}")
    if BACKOFF:
        lo = A.newlabel("L_pok")
        A(f"s_cbranch_vccz {lo}")
        A(f"s_sleep {BACKOFF}")
        A(f"s_branch {lp}")
        A.label(lo)
    else:
        A(f"s_cbranch_vccnz {lp}")


def lds_spin(off, val, label):
    A(f"v_mov_b32 {vT[4]}, {FLAG}")
    A.label(label)
    A(f"ds_read_b32 {vT[5]}, {vT[4]} offset:{off}")
    A(f"s_sub_u32 {sSPIN}, {sSPIN}, 1")
    A("s_cbranch_scc1 L_END")
    A("s_waitcnt lgkmcnt(0)")
    A(f"v_cmp_ne_u32 vcc, {val}, {vT[5]}")
    lo = A.newlabel("L_spin_ok")
    A(f"s_cbranch_vccz {lo}")
    A("s_sleep 1")
    A(f"s_branch {label}")
    A.label(lo)


def lds_inc(off):
    A(f"v_mov_b32 {vT[4]}, {FLAG}")
    A(f"v_mov_b32 {vT[5]}, 1")
    A("s_mov_b64 exec, 1")
    A(f"ds_add_u32 {vT[4]}, {vT[5]} offset:{off}")
    A("s_mov_b64 exec, -1")


def role_compute(lskip):
    A(f"s_cmp_lt_u32 {sW}, 4")
    A(f"s_cbranch_scc1 {lskip}")


def role_w0(lskip):
    A(f"s_cmp_eq_u32 {sW}, 0")
    A(f"s_cbranch_scc0 {lskip}")


XR = WK
WA = WK + 16
WB = WK + 32
AC0, AC1, AC2 = WK + 48, WK + 52, WK + 56


def init_ones(nq):
    A(f"s_mov_b64 exec, {M_NX}")
    for i in range(4 * nq):
        A(f"v_mov_b32 v{XR+i}, v{ONES}")
    A("s_mov_b64 exec, -1")


def wread(base_reg, addr, off, nsteps):
    for t in range(nsteps):
        A(f"ds_read_b64_tr_b16 v[{base_reg+4*t}:{base_reg+4*t+1}], {addr} offset:{off + t*1024}")
        A(f"ds_read_b64_tr_b16 v[{base_reg+4*t+2}:{base_reg+4*t+3}], {addr} offset:{off + t*1024 + 128}")


def xpoll(voff, soff, nq, pre_sleep=0):
    def issue():
        A(f"s_mov_b64 exec, {M_X}")
        for i in range(nq):
            A(f"buffer_load_dwordx4 {vq(XR+4*i)}, {voff}, {srd(S_G)}, {soff} offen offset:{i*512} sc1")
        A("s_mov_b64 exec, -1")
    poll(issue, range(XR, XR + 4 * nq), pre_sleep)


def chain(acc, wreg, n):
    for i in range(n):
        c = "0" if i == 0 else vq(acc)
        A(f"v_mfma_f32_16x16x32_bf16 {vq(acc)}, {vq(XR+4*i)}, {vq(wreg+4*i)}, {c}")


def gram(acc, n):
    for i in range(n):
        c = "0" if i == 0 else vq(acc)
        A(f"v_mfma_f32_16x16x32_bf16 {vq(acc)}, {vq(XR+4*i)}, {vq(XR+4*i)}, {c}")


def rd4(dst, addr, off256):
    A(f"ds_read2st64_b32 v[{dst}:{dst+1}], {addr} offset0:{off256} offset1:{off256+12}")
    A(f"ds_read2st64_b32 v[{dst+2}:{dst+3}], {addr} offset0:{off256+24} offset1:{off256+36}")


def sum4(dst, src):
    A(f"v_add_f32 v{src}, v{src}, v{src+1}")
    A(f"v_add_f32 v{src+2}, v{src+2}, v{src+3}")
    A(f"v_add_f32 {dst}, v{src}, v{src+2}")


def ln_stats(s1, s2):
    A(f"v_mul_f32 {s1}, {sINV512}, {s1}")
    A(f"v_mul_f32 {s2}, {sINV512}, {s2}")
    A(f"v_fma_f32 {s2}, -{s1}, {s1}, {s2}")
    A(f"v_max_f32 {s2}, 0, {s2}")
    A(f"v_add_f32 {s2}, {sEPS}, {s2}")
    A(f"v_rsq_f32 {s2}, {s2}")


def q_partial_tail():
    chain(AC0, WA, 4)
    gram(AC2, 4)
    A(f"ds_write_b128 {vPW}, {vq(AC0)}")
    A(f"ds_write_b128 {vPW}, {vq(AC2)} offset:2048")
    A("s_waitcnt lgkmcnt(0)")


def q_finalize():
    R = WK
    A(f"v_add_u32 {vT[1]}, 16, {vFA}")
    A(f"v_add_u32 {vT[2]}, 16, {vFC}")
    rd4(R + 16, vFS1, 0)
    rd4(R + 20, vFS2, 0)
    rd4(R, vFA, 0)
    rd4(R + 4, vT[1], 0)
    rd4(R + 8, vFC, 0)
    rd4(R + 12, vT[2], 0)
    A("s_waitcnt lgkmcnt(8)")
    sum4(f"v{R+24}", R + 16)
    sum4(f"v{R+25}", R + 20)
    ln_stats(f"v{R+24}", f"v{R+25}")
    A("s_waitcnt lgkmcnt(0)")
    sum4(f"v{R+26}", R)
    sum4(f"v{R+27}", R + 4)
    sum4(f"v{R+28}", R + 8)
    sum4(f"v{R+29}", R + 12)
    A(f"v_fma_f32 v{R+26}, -v{R+24}, v{R+28}, v{R+26}")
    A(f"v_fma_f32 v{R+27}, -v{R+24}, v{R+29}, v{R+27}")
    A(f"v_mul_f32 v{R+26}, v{R+26}, v{R+25}")
    A(f"v_mul_f32 v{R+27}, v{R+27}, v{R+25}")
    A(f"v_cvt_pk_bf16_f32 {vT[1]}, v{R+26}, v{R+27}")


A(f"; @launch grid=(256,1,1) block=(512,1,1) lds={LDS_TOTAL}")
A('.amdgcn_target "amdgcn-amd-amdhsa--gfx950"')
A(".text")
A(f".globl {KN}")
A(".p2align 8")
A(f".type {KN},@function")
A(f"{KN}:")
A("s_cmp_ge_u32 s2, 256")
A("s_cbranch_scc1 L_END")
A("s_load_dwordx16 s[8:23], s[0:1], 0")
A("s_load_dwordx8 s[24:31], s[0:1], 64")
A("s_memrealtime s[94:95]")
A(f"v_and_b32 {vLANE}, 63, v0")
A(f"v_lshrrev_b32 {vT[0]}, 6, v0")
A(f"v_readfirstlane_b32 {sW}, {vT[0]}")
A(f"s_and_b32 {sG}, s2, 7")
A(f"s_lshr_b32 {sJ}, s2, 3")
A(f"s_lshr_b32 {sB}, {sJ}, 2")
A(f"s_and_b32 {sS}, {sJ}, 3")
if PROFILE:
    A(f"v_mov_b32 {vTS}, 0")
    A("s_mov_b32 s92, 63")
    A("s_mov_b32 s90, 0")
ts(0)
A(f"v_mov_b32 {vT[1]}, {FLAG}")
A(f"v_mov_b32 {vT[2]}, 0")
A(f"ds_write_b32 {vT[1]}, {vT[2]}")
A(f"ds_write_b32 {vT[1]}, {vT[2]} offset:4")
A(f"ds_write_b32 {vT[1]}, {vT[2]} offset:8")
A(f"ds_write_b32 {vT[1]}, {vT[2]} offset:12")
A(f"ds_write_b32 {vT[1]}, {vT[2]} offset:16")
vI, vSl = vT[3], vT[4]
A(f"v_and_b32 {vI}, 15, {vLANE}")
A(f"v_lshrrev_b32 {vSl}, 4, {vLANE}")
A(f"v_xor_b32 {vT[5]}, {vI}, {vSl}")
A(f"v_lshlrev_b32 {vT[5]}, 4, {vT[5]}")
A(f"v_lshl_add_u32 {vKq[0]}, {vSl}, 8, {vT[5]}")
for q in range(1, 4):
    A(f"v_xor_b32 {vKq[q]}, {q << 6}, {vKq[0]}")
A(f"v_lshlrev_b32 {vT[5]}, 1, {vSl}")
A(f"v_xor_b32 {vT[5]}, {vI}, {vT[5]}")
A(f"v_lshlrev_b32 {vT[5]}, 4, {vT[5]}")
A(f"v_lshl_add_u32 {vVq[0]}, {vSl}, 8, {vT[5]}")
A(f"v_xor_b32 {vVq[1]}, 0x80, {vVq[0]}")
A(f"v_xor_b32 {vT[8]}, {sW}, {vLANE}")
A(f"v_lshlrev_b32 {vT[8]}, 4, {vT[8]}")
A(f"v_lshrrev_b32 {vT[7]}, 1, {vLANE}")
A(f"v_and_b32 {vT[6]}, 1, {vLANE}")
A(f"v_lshlrev_b32 {vT[6]}, 4, {vT[6]}")
A(f"v_lshl_add_u32 {vT[7]}, {vT[7]}, 13, {vT[6]}")
A(f"s_add_u32 {sSTG}, {sW}, 1")
A(f"s_lshl_b32 {sSTG}, {sSTG}, 13")
A(f"s_cmp_eq_u32 {sW}, 0")
A(f"s_cselect_b32 {sSTG}, 0, {sSTG}")
A(f"s_lshl_b32 {sT0}, {sW}, 2")
A(f"s_add_u32 {sT0}, {sT0}, {sJ}")
for T in range(4):
    A(f"s_add_u32 s{sTILE[T]}, {sT0}, {T}")
    A(f"s_and_b32 s{sTILE[T]}, s{sTILE[T]}, 31")
    A(f"s_lshl_b32 s{sTILE[T]}, s{sTILE[T]}, 12")
A(f"s_lshl_b32 {sT2}, {sB}, 3")
A(f"s_add_u32 {sT2}, {sT2}, {sG}")
A(f"s_lshl_b32 {sT2}, {sT2}, 21")
A(f"s_lshl_b32 {sT1}, {sS}, 17")
A(f"s_add_u32 {sT2}, {sT2}, {sT1}")
A(f"s_add_u32 {sT2}, {sT2}, 0x180000")
A(f"s_lshl_b32 {sT0}, {sG}, 10")
A(f"s_lshl_b32 {sT1}, {sJ}, 5")
A(f"s_add_u32 {sT0}, {sT0}, {sT1}")
A(f"s_sub_u32 {sT1}, 0x400000, {sT0}")
A("s_waitcnt lgkmcnt(0)")
A("s_barrier")
if DBGT:
    A("s_mov_b32 s95, s94")
make_srd(S_K, P_K, off_sgpr=sT2, size=0x20000)
make_srd(S_T, P_WQ, off_sgpr=sT0, size=sT1)
make_srd(S_T2, P_X, size=8192)
def startup_loads():
    A(f"s_lshl_b32 {sT1}, {sW}, 10")
    A(f"s_add_u32 m0, {sT1}, {XSTG}")
    A(f"buffer_load_dwordx4 {vT[8]}, {srd(S_T2)}, {sT1} offen lds")
    ts(18)
    A(f"s_lshl_b32 {sT0}, {sJ}, 4")
    A(f"s_lshl_b32 {sT1}, {sW}, 1")
    A(f"s_add_u32 {sT0}, {sT0}, {sT1}")
    A(f"s_lshl_b32 {sT0}, {sT0}, 13")
    A(f"s_lshl_b32 {sT1}, {sJ}, 5")
    A(f"s_sub_u32 {sT0}, {sT0}, {sT1}")
    A(f"v_lshlrev_b32 {vT[6]}, 4, {vLANE}")
    if not NOWQF:
        A(f"buffer_load_dwordx4 v[240:243], {vT[6]}, {srd(S_T)}, {sT0} offen{PFNT}")
        A(f"s_add_u32 {sT0}, {sT0}, 8192")
        A(f"buffer_load_dwordx4 v[240:243], {vT[6]}, {srd(S_T)}, {sT0} offen{PFNT}")
    ts(19)


def wq_pieces():
    A(f"s_lshl_b32 {sT0}, {sG}, 10")
    A(f"s_lshl_b32 {sT1}, {sJ}, 5")
    A(f"s_add_u32 {sT0}, {sT0}, {sT1}")
    A(f"s_sub_u32 {sT1}, 0x400000, {sT0}")
    make_srd(S_T, P_WQ, off_sgpr=sT0, size=sT1)
    A(f"v_lshrrev_b32 {vT[7]}, 1, {vLANE}")
    A(f"v_and_b32 {vT[6]}, 1, {vLANE}")
    A(f"v_lshlrev_b32 {vT[6]}, 4, {vT[6]}")
    A(f"v_lshl_add_u32 {vT[7]}, {vT[7]}, 13, {vT[6]}")
    A(f"s_lshl_b32 {sT0}, {sW}, 11")
    A(f"s_add_u32 m0, {sT0}, {WQI}")
    A(f"s_lshl_b32 {sT1}, {sW}, 19")
    A(f"buffer_load_dwordx4 {vT[7]}, {srd(S_T)}, {sT1} offen lds")
    A(f"s_add_u32 m0, {sT0}, {WQI + 1024}")
    A(f"s_add_u32 {sT1}, {sT1}, {32*8192}")
    A(f"buffer_load_dwordx4 {vT[7]}, {srd(S_T)}, {sT1} offen lds")


def wo_prefetch():
    A(f"s_lshl_b32 {sT0}, {sG}, 9")
    A(f"s_lshl_b32 {sT1}, {sJ}, 4")
    A(f"s_add_u32 {sT0}, {sT0}, {sT1}")
    A(f"s_lshl_b32 {sT1}, {sW}, 1")
    A(f"s_add_u32 {sT0}, {sT0}, {sT1}")
    A(f"s_lshl_b32 {sT0}, {sT0}, 10")
    make_srd(S_T, P_WO, size=0x400000)
    A(f"v_lshlrev_b32 {vT[6]}, 4, {vLANE}")
    A(f"buffer_load_dwordx4 {vq(DUMMY)}, {vT[6]}, {srd(S_T)}, {sT0} offen{PFNT}")
    A(f"buffer_load_dwordx4 {vq(DUMMY)}, {vT[6]}, {srd(S_T)}, {sT0} offen offset:1024{PFNT}")


ts(24)
if not KFIRST:
    startup_loads()


def kv_one(i, ring=2):
    n, q = i // 4, i % 4
    T = n % 4
    srdn, voffs = (S_K, vKq) if i < 16 else (S_V, vVq)
    if q == 0:
        A(f"s_add_u32 m0, {sSTG}, {(n % ring)*4096}")
    A(f"buffer_load_dwordx4 {voffs[q % len(voffs)]}, {srd(srdn)}, s{sTILE[T]} offen offset:{q*1024} nt lds")


def readout(n, ring=2):
    slot = (n % ring) * 4096
    if n < 4:
        for c in range(4):
            A(f"ds_read_b128 {vq(KREG + (4*n+c)*4)}, {vKr[c]} offset:{slot}")
    else:
        T = n - 4
        u, half = T >> 1, T & 1
        for dt in range(8):
            a_ = vT[4 + (dt & 1)]
            if dt == 0:
                a_ = vVr0
            else:
                A(f"v_xor_b32 {a_}, {dt << 5}, {vVr0}")
            r = VREG + (8 * u + dt) * 4 + 2 * half
            A(f"ds_read_b64_tr_b16 v[{r}:{r+1}], {a_} offset:{slot}")


FIRST = 4
for i in range(FIRST):
    kv_one(i)
ts(21)
if KFIRST:
    startup_loads()
make_srd(S_V, P_V, off_sgpr=sT2, size=0x20000)
A(f"s_lshl_b32 {sT0}, {sG}, 18")
make_srd(S_G, P_WS, off_sgpr=sT0, size=0x40000)
A(f"s_lshl_b32 {sT0}, {sJ}, 13")
A(f"s_add_u32 {sT0}, {sT0}, {hex(AR_BASE)}")
make_srd(S_AR, P_WS, off_sgpr=sT0, size=0xC2000)
A(f"s_mov_b32 {sSPIN}, 0x40000")
A("s_mov_b32 s64, 0x00ff00ff")
A("s_mov_b32 s65, 0x00ff00ff")
A("s_mov_b32 s66, 0xff00ff00")
A("s_mov_b32 s67, 0xff00ff00")
A(f"s_sub_u32 {sCW}, {sW}, 4")
A("v_mov_b32 v250, 0")
A(f"v_lshlrev_b32 v252, 4, {vLANE}")
lw0 = A.newlabel("L_pre0"); lpe = A.newlabel("L_pree")
A(f"s_cmp_eq_u32 {sW}, 0")
A(f"s_cbranch_scc1 {lw0}")
for i in range(4):
    A(f"v_mov_b32 v{DUMMY+i}, -1")
A(f"s_mul_i32 {sT0}, {sJ}, 7168")
A(f"s_lshl_b32 {sT1}, {sW}, 10")
A(f"s_add_u32 {sT0}, {sT0}, {sT1}")
A(f"s_add_u32 {sT0}, {sT0}, {G_CLR0 - 1024}")
A(f"v_lshl_add_u32 {vT[5]}, {vLANE}, 4, {sT0}")
if not NOCLR:
    A(f"buffer_store_dwordx4 {vq(DUMMY)}, {vT[5]}, {srd(S_G)}, 0 offen" + ("" if PLAINCLR else " sc1"))
lpf = A.newlabel("L_pf")
A(f"s_cmp_eq_u32 {sW}, 1")
A(f"s_cbranch_scc1 {lpf}")
A(f"s_branch {lpe}")
A.label(lpf)
A("s_getpc_b64 s[84:85]")
A(f"v_lshlrev_b32 {vT[8]}, 6, {vLANE}")
for i in range(NPF):
    A(f"global_load_dword {vT[9]}, {vT[8]}, s[84:85]")
    A("s_add_u32 s84, s84, 4096")
    A("s_addc_u32 s85, s85, 0")
A(f"s_branch {lpe}")
A.label(lw0)
make_srd(S_T, P_DBG, size=256)
lnl = A.newlabel("L_nolead")
A("s_cmp_eq_u32 s2, 0")
A(f"s_cbranch_scc0 {lnl}")
A("s_lshl_b32 s94, s94, 4")
A("s_or_b32 s94, s94, 0x80000000")
A("v_mov_b32 v251, s94")
A("s_mov_b64 exec, 1")
A(f"buffer_store_dword v251, v250, {srd(S_T)}, 0 offen sc1")
A("s_mov_b64 exec, -1")
A.label(lnl)
A(f"v_lshrrev_b32 {vT[8]}, 3, {vLANE}")
A(f"v_and_b32 {vT[9]}, 7, {vLANE}")
A(f"v_lshlrev_b32 {vT[9]}, 2, {vT[9]}")
A(f"v_lshl_add_u32 {vXNAT}, {vT[8]}, 10, {vT[9]}")
A(f"s_lshl_b32 {sT0}, {sJ}, 5")
A(f"v_add_u32 {vXNAT}, {sT0}, {vXNAT}")
A(f"buffer_load_dword {vXO0}, {vXNAT}, {srd(S_T2)}, 0 offen")
A.label(lpe)
ts(25)

A(f"v_and_b32 {vI}, 15, {vLANE}")
A(f"v_lshrrev_b32 {vSl}, 4, {vLANE}")
A(f"s_mov_b32 {sC1}, 0x3e0293ee")
A(f"s_mov_b32 {sINV512}, 0x3b000000")
A(f"s_mov_b32 {sEPS}, 0x3727c5ac")
A(f"s_mov_b32 {sNLOG2E}, 0xbfb8aa3b")
A(f"v_mov_b32 {vSENT}, -2")
for i in range(4):
    A(f"v_mov_b32 v{ONES+i}, 0x3f803f80")
A(f"v_xor_b32 {vT[5]}, {vI}, {vSl}")
A(f"v_lshlrev_b32 {vT[5]}, 4, {vT[5]}")
A(f"v_lshl_add_u32 {vT[5]}, {vI}, 8, {vT[5]}")
A(f"v_add_u32 {vKr[0]}, {sSTG}, {vT[5]}")
for c in range(1, 4):
    A(f"v_xor_b32 {vKr[c]}, {c << 6}, {vKr[0]}")
A(f"v_lshrrev_b32 {vT[5]}, 2, {vI}")
A(f"v_lshl_add_u32 {vT[5]}, {vSl}, 2, {vT[5]}")
A(f"v_and_b32 {vT[6]}, 7, {vT[5]}")
A(f"v_lshlrev_b32 {vT[6]}, 5, {vT[6]}")
A(f"v_lshl_add_u32 {vT[6]}, {vT[5]}, 8, {vT[6]}")
A(f"v_and_b32 {vT[7]}, 3, {vLANE}")
A(f"v_lshl_add_u32 {vT[6]}, {vT[7]}, 3, {vT[6]}")
A(f"v_add_u32 {vVr0}, {sSTG}, {vT[6]}")
A(f"s_lshl_b32 {sT0}, {sB}, 10")
A(f"v_lshlrev_b32 {vT[5]}, 4, {vT[7]}")
A(f"v_lshl_add_u32 {vT[5]}, {vSl}, 6, {vT[5]}")
A(f"v_add_u32 {vQOFF}, {sT0}, {vT[5]}")
A(f"v_xor_b32 {vT[5]}, {vSl}, {vT[7]}")
A(f"v_lshlrev_b32 {vT[5]}, 4, {vT[5]}")
A(f"v_lshl_add_u32 {vT[5]}, {vT[7]}, 9, {vT[5]}")
A(f"v_lshrrev_b32 {vT[6]}, 2, {vI}")
A(f"v_lshl_add_u32 {vT[5]}, {vT[6]}, 6, {vT[5]}")
A(f"s_add_u32 {sT0}, {sW}, 1")
A(f"s_lshl_b32 {sT0}, {sT0}, 13")
A(f"v_add_u32 {vOPW}, {sT0}, {vT[5]}")
A(f"s_lshr_b32 {sT0}, {sW}, 1")
A(f"s_lshl_b32 {sT1}, {sT0}, 9")
A(f"s_and_b32 {sT2}, {sW}, 1")
A(f"s_lshl_b32 {sT2}, {sT2}, 8")
A(f"s_add_u32 {sT1}, {sT1}, {sT2}")
A(f"v_lshrrev_b32 {vT[5]}, 2, {vLANE}")
A(f"v_and_b32 {vT[5]}, 3, {vT[5]}")
A(f"v_xor_b32 {vT[5]}, {sT0}, {vT[5]}")
A(f"v_lshlrev_b32 {vT[5]}, 4, {vT[5]}")
A(f"v_lshrrev_b32 {vT[6]}, 4, {vLANE}")
A(f"v_lshl_add_u32 {vT[5]}, {vT[6]}, 6, {vT[5]}")
A(f"v_and_b32 {vT[6]}, 3, {vLANE}")
A(f"v_lshl_add_u32 {vT[5]}, {vT[6]}, 2, {vT[5]}")
A(f"s_add_u32 {sT1}, {sT1}, 8192")
A(f"v_add_u32 {vOPR0}, {sT1}, {vT[5]}")
A(f"s_mul_i32 {sT1}, {sJ}, {OPS}")
A(f"s_lshl_b32 {sT2}, {sW}, 8")
A(f"s_add_u32 {sT1}, {sT1}, {sT2}")
A(f"v_lshl_add_u32 {vOPS}, {vLANE}, 2, {sT1}")
A(f"s_lshl_b32 {sT1}, {sW}, 5")
A(f"s_add_u32 {sT1}, {sT1}, {STAT}")
A(f"v_lshl_add_u32 {vSTW}, {vT[7]}, 3, {sT1}")
A(f"s_lshl_b32 {sT0}, {sT0}, 3")
A(f"s_add_u32 {sT0}, {sT0}, {STAT}")
A(f"v_mov_b32 {vSTR}, {sT0}")
A(f"v_lshlrev_b32 {vT[5]}, 4, {vI}")
A(f"v_lshl_add_u32 {vT[5]}, {vSl}, 7, {vT[5]}")
A(f"s_lshl_b32 {sT0}, {sCW}, 11")
A(f"v_add_u32 {vXOFF}, {sT0}, {vT[5]}")
A(f"s_lshl_b32 {sT0}, {sCW}, 10")
A(f"v_add_u32 {vHOFF}, {sT0}, {vT[5]}")
A(f"s_mul_i32 {sT0}, {sCW}, 3072")
A(f"s_add_u32 {sT0}, {sT0}, {PART}")
A(f"v_lshl_add_u32 {vPW}, {vLANE}, 4, {sT0}")
A(f"v_and_b32 {vT[8]}, 3, {vI}")
A(f"v_xor_b32 {vT[8]}, {vSl}, {vT[8]}")
A(f"v_lshlrev_b32 {vT[8]}, 4, {vT[8]}")
A(f"v_and_b32 {vT[6]}, 4, {vI}")
A(f"v_lshl_add_u32 {vT[8]}, {vT[6]}, 4, {vT[8]}")
A(f"v_and_b32 {vT[6]}, 7, {vI}")
A(f"v_lshl_add_u32 {vT[8]}, {vT[6]}, 10, {vT[8]}")
A(f"s_lshl_b32 {sT0}, {sCW}, 8")
A(f"v_xor_b32 {vX0R}, {sT0}, {vT[8]}")
A(f"v_lshrrev_b32 {vT[5]}, 2, {vI}")
A(f"v_lshl_add_u32 {vT[5]}, {vSl}, 3, {vT[5]}")
A(f"v_lshlrev_b32 {vT[5]}, 5, {vT[5]}")
A(f"v_and_b32 {vT[6]}, 3, {vLANE}")
A(f"v_lshl_add_u32 {vT[5]}, {vT[6]}, 3, {vT[5]}")
A(f"s_mul_i32 {sT0}, {sCW}, {WSTR}")
A(f"s_add_u32 {sT0}, {sT0}, {WBASE}")
A(f"v_add_u32 {vWOWN}, {sT0}, {vT[5]}")
A(f"s_lshl_b32 {sT0}, {sCW}, 12")
A(f"s_add_u32 {sT0}, {sT0}, {WQI}")
A(f"v_add_u32 {vWQ}, {sT0}, {vT[5]}")
vBb, vNp = vT[5], vT[6]
A(f"v_lshrrev_b32 {vBb}, 3, {vLANE}")
A(f"v_and_b32 {vNp}, 7, {vLANE}")
A(f"v_lshrrev_b32 {vT[7]}, 2, {vBb}")
A(f"v_lshlrev_b32 {vT[7]}, 8, {vT[7]}")
A(f"v_and_b32 {vT[8]}, 3, {vBb}")
A(f"v_lshl_add_u32 {vT[7]}, {vT[8]}, 2, {vT[7]}")
A(f"v_add_u32 {vT[7]}, {PART}, {vT[7]}")
A(f"v_lshl_add_u32 {vFA}, {vNp}, 5, {vT[7]}")
A(f"v_add_u32 {vFS1}, {2048 + 8*16}, {vT[7]}")
A(f"v_lshl_add_u32 {vFS2}, {vBb}, 4, {vT[7]}")
A(f"v_add_u32 {vFS2}, 2048, {vFS2}")
A(f"v_lshlrev_b32 {vT[8]}, 5, {vNp}")
A(f"v_add_u32 {vFC}, {PART + 32*16}, {vT[8]}")
A(f"s_lshl_b32 {sT0}, {sG}, 5")
A(f"s_add_u32 {sT0}, {sT0}, {sJ}")
A(f"s_mul_i32 {sT0}, {sT0}, 14")
A(f"s_and_b32 {sDELTA}, {sT0}, 15")
A(f"s_lshr_b32 {sDELTA}, {sDELTA}, 1")
A(f"v_add_u32 {vT[8]}, {sDELTA}, {vNp}")
A(f"v_lshl_add_u32 {vFG}, {vT[8]}, 4, {vT[7]}")
A(f"v_lshlrev_b32 {vT[8]}, 4, {vT[8]}")
A(f"v_add_u32 {vFCG}, {PART + 32*16}, {vT[8]}")
A(f"v_lshlrev_b32 {vALD}, 3, {vLANE}")
A(f"s_lshl_b32 {sT0}, {sG}, 10")
A(f"v_lshl_add_u32 {vAST}, {vLANE}, 4, {sT0}")
A(f"v_and_b32 {vT[8]}, 3, {vNp}")
A(f"v_lshlrev_b32 {vT[8]}, 2, {vT[8]}")
A(f"v_lshl_add_u32 {vT[8]}, {vBb}, 4, {vT[8]}")
A(f"v_lshrrev_b32 {vT[9]}, 2, {vNp}")
A(f"v_lshl_add_u32 {vXST}, {vT[9]}, 7, {vT[8]}")
A(f"s_lshl_b32 {sT0}, {sJ}, 8")
A(f"v_add_u32 {vXST}, {sT0}, {vXST}")
A(f"v_lshlrev_b32 {vT[8]}, 2, {vNp}")
A(f"v_lshl_add_u32 {vT[8]}, {vBb}, 10, {vT[8]}")
A(f"s_lshl_b32 {sT0}, {sJ}, 5")
A(f"v_add_u32 {vXNAT}, {sT0}, {vT[8]}")
A(f"s_and_b32 {sT0}, {sJ}, 7")
A(f"s_lshr_b32 {sT1}, {sT0}, 1")
A(f"s_lshl_b32 {sT1}, {sT1}, 8")
A(f"s_and_b32 {sT0}, {sJ}, 1")
A(f"s_lshl_b32 {sT0}, {sT0}, 7")
A(f"s_add_u32 {sT1}, {sT1}, {sT0}")
A(f"s_lshr_b32 {sT0}, {sJ}, 3")
A(f"s_lshl_b32 {sT0}, {sT0}, 4")
A(f"s_add_u32 {sT1}, {sT1}, {sT0}")
A(f"v_and_b32 {vT[8]}, 3, {vNp}")
A(f"v_lshlrev_b32 {vT[8]}, 2, {vT[8]}")
A(f"v_lshl_add_u32 {vT[8]}, {vT[9]}, 6, {vT[8]}")
A(f"v_lshl_add_u32 {vT[8]}, {vBb}, 10, {vT[8]}")
A(f"v_add_u32 {vQST}, {sT1}, {vT[8]}")
A(f"v_lshrrev_b32 {vT[8]}, 1, {vNp}")
A(f"v_lshlrev_b32 {vT[8]}, 2, {vT[8]}")
A(f"v_lshl_add_u32 {vT[8]}, {vBb}, 4, {vT[8]}")
A(f"s_lshl_b32 {sT0}, {sJ}, 7")
A(f"v_add_u32 {vHST}, {sT0}, {vT[8]}")
A(f"s_mul_i32 {sT0}, {sB}, {4*OPS}")
A(f"s_lshl_b32 {sT1}, {sS}, 9")
A(f"s_add_u32 {sT1}, {sT1}, {sT0}")
A(f"v_add_u32 {vH1a}, {sT1}, {vALD}")
A(f"v_add_u32 {vH1b}, {2*OPS}, {vH1a}")
A(f"s_lshl_b32 {sT1}, {sS}, 3")
A(f"s_add_u32 {sT1}, {sT1}, {sT0}")
A(f"s_add_u32 {sT1}, {sT1}, 2048")
A(f"v_mov_b32 {vH1sa}, {sT1}")
A(f"v_add_u32 {vH1sb}, {2*OPS}, {vH1sa}")
A(f"s_lshl_b32 {sT0}, {sB}, 4")
A(f"s_lshl_b32 {sT1}, {sS}, 11")
A(f"s_add_u32 {sT0}, {sT0}, {sT1}")
A(f"v_and_b32 {vT[8]}, 3, {vLANE}")
A(f"v_lshlrev_b32 {vT[8]}, 2, {vT[8]}")
A(f"v_lshrrev_b32 {vT[9]}, 2, {vLANE}")
A(f"v_lshl_add_u32 {vT[8]}, {vT[9]}, 7, {vT[8]}")
A(f"v_add_u32 {vONS}, {sT0}, {vT[8]}")


def hook_nonce_issue():
    make_srd(S_T, P_DBG, size=256)
    A("s_mov_b64 exec, 1")
    A(f"buffer_load_dword v251, v250, {srd(S_T)}, 0 offen sc1")
    A("s_mov_b64 exec, -1")


def nonce_check():
    ln = A.newlabel("L_nonce"); lk = A.newlabel("L_nonce_ok")
    A.label(ln)
    A(f"v_readfirstlane_b32 {sNONCE}, v251")
    A(f"s_cmp_lg_u32 {sNONCE}, 0")
    A(f"s_cbranch_scc1 {lk}")
    A("s_sleep 4")
    make_srd(S_T, P_DBG, size=256)
    A("s_mov_b64 exec, 1")
    A(f"buffer_load_dword v251, v250, {srd(S_T)}, 0 offen sc1")
    A("s_mov_b64 exec, -1")
    A(f"s_sub_u32 {sSPIN}, {sSPIN}, 1")
    A("s_cbranch_scc1 L_END")
    A("s_waitcnt vmcnt(0)")
    A(f"s_branch {ln}")
    A.label(lk)


def hook_arrive():
    nonce_check()
    lab = A.newlabel("L_cBw")
    lds_spin(12, 8, lab)
    A("s_getreg_b32 s84, hwreg(HW_REG_XCC_ID, 0, 4)")
    if FORCE_SLOW:
        A(f"s_lshr_b32 {sT1}, {sJ}, 4")
        A(f"s_xor_b32 {sT0}, {sT0}, {sT1}")
    A(f"s_or_b32 {sINC}, {sT0}, {sNONCE}")
    A(f"v_mov_b32 {vT[9]}, {sINC}")
    A(f"s_lshl_b32 {sT0}, {sJ}, 4")
    A(f"v_mov_b32 {vT[8]}, {sT0}")
    A(f"s_mov_b32 {sT1}, {hex(G_ARR)}")
    A("s_mov_b64 exec, 1")
    A(f"buffer_store_dword {vT[9]}, {vT[8]}, {srd(S_G)}, {sT1} offen")
    A("s_mov_b64 exec, -1")
    ts(28)


def arr_issue(base):
    A(f"s_mov_b32 {sT1}, {hex(base)}")
    A("s_mov_b32 exec_lo, -1")
    A("s_mov_b32 exec_hi, 0")
    A(f"buffer_load_dword v253, v252, {srd(S_G)}, {sT1} offen sc1")
    A("s_mov_b64 exec, -1")


def hook_poll():
    A(f"v_lshlrev_b32 v252, 4, {vLANE}")
    arr_issue(G_ARR)


def hook_check():
    A(f"s_mov_b32 {sT2}, 3000")
    A.label("L_ARR")
    A("s_mov_b32 exec_lo, -1")
    A("s_mov_b32 exec_hi, 0")
    A(f"v_xor_b32 {vT[6]}, {sNONCE}, v253")
    A(f"v_cmp_lt_u32 vcc, 15, {vT[6]}")
    A("s_mov_b64 exec, -1")
    A("s_cbranch_vccz L_ARR_OK")
    A(f"s_sub_u32 {sT2}, {sT2}, 1")
    A("s_cbranch_scc1 L_ARR_SLOW")
    A(f"s_sleep {ARR_SLEEP}")
    arr_issue(G_ARR)
    A("s_waitcnt vmcnt(0)")
    A("s_branch L_ARR")
    A.label("L_ARR_OK")
    A("s_mov_b32 exec_lo, -1")
    A("s_mov_b32 exec_hi, 0")
    A(f"v_cmp_ne_u32 vcc, {sINC}, v253")
    A("s_mov_b64 exec, -1")
    A(f"s_mov_b32 {sMODE}, 1")
    A("s_cbranch_vccz L_MODE_OK")
    A.label("L_ARR_SLOW")
    A(f"s_mov_b32 {sMODE}, 2")
    A("buffer_wbl2 sc1")
    A("s_waitcnt vmcnt(0)")
    A(f"v_mov_b32 {vT[9]}, {sNONCE}")
    A(f"s_lshl_b32 {sT0}, {sJ}, 4")
    A(f"v_mov_b32 {vT[8]}, {sT0}")
    A(f"s_mov_b32 {sT1}, {hex(G_ARR2)}")
    A("s_mov_b64 exec, 1")
    A(f"buffer_store_dword {vT[9]}, {vT[8]}, {srd(S_G)}, {sT1} offen sc1")
    A("s_mov_b64 exec, -1")
    A.label("L_ARR2")
    arr_issue(G_ARR2)
    A(f"s_sub_u32 {sSPIN}, {sSPIN}, 1")
    A("s_cbranch_scc1 L_END")
    A("s_waitcnt vmcnt(0)")
    A("s_mov_b32 exec_lo, -1")
    A("s_mov_b32 exec_hi, 0")
    A(f"v_cmp_ne_u32 vcc, {sNONCE}, v253")
    A("s_mov_b64 exec, -1")
    A("s_cbranch_vccnz L_ARR2")
    A.label("L_MODE_OK")
    A(f"v_mov_b32 {vT[6]}, {FLAG}")
    A(f"v_mov_b32 {vT[7]}, {sMODE}")
    A(f"ds_write_b32 {vT[6]}, {vT[7]}")
    ts(27)


def hook_q1_final():
    lab = A.newlabel("L_c1w")
    lds_spin(4, 8, lab)
    ts(1)
    vI_, vS_ = vT[3], vT[4]
    A(f"v_and_b32 {vI_}, 15, {vLANE}")
    A(f"v_lshrrev_b32 {vS_}, 4, {vLANE}")
    A(f"s_mov_b64 exec, {M_NX}")
    for t in range(64):
        A(f"v_mov_b32 v{VREG+t}, v{ONES}")
    A(f"s_mov_b64 exec, {M_X}")
    A(f"s_lshl_b32 {sT0}, {sCW}, 8")
    A(f"v_xor_b32 {vT[8]}, {sT0}, {vX0R}")
    for t in range(16):
        a_ = vT[5 + (t & 1)]
        A(f"v_xor_b32 {a_}, {t*64}, {vT[8]}")
        A(f"v_add_u32 {a_}, {XSTG}, {a_}")
        A(f"ds_read_b128 {vq(VREG+4*t)}, {a_}")
    A("s_mov_b64 exec, -1")
    A(f"s_lshl_b32 {sT0}, {sCW}, 12")
    A(f"v_subrev_u32 {vT[9]}, {sT0}, {vWQ}")
    D0_, G0_, W0_ = WK, WK + 4, WK + 16
    for hf in range(2):
        for t in range(8):
            tt = 8 * hf + t
            A(f"ds_read_b64_tr_b16 v[{W0_+4*t}:{W0_+4*t+1}], {vT[9]} offset:{tt*1024}")
            A(f"ds_read_b64_tr_b16 v[{W0_+4*t+2}:{W0_+4*t+3}], {vT[9]} offset:{tt*1024+128}")
        A("s_waitcnt lgkmcnt(0)")
        for t in range(8):
            tt = 8 * hf + t
            c_d = "0" if tt == 0 else vq(D0_)
            c_g = "0" if tt == 0 else vq(G0_)
            A(f"v_mfma_f32_16x16x32_bf16 {vq(D0_)}, {vq(VREG+4*tt)}, {vq(W0_+4*t)}, {c_d}")
            A(f"v_mfma_f32_16x16x32_bf16 {vq(G0_)}, {vq(VREG+4*tt)}, {vq(VREG+4*tt)}, {c_g}")
        if hf == 0:
            A("s_nop 7")
    S1, S2, QV, CS, CT = WK + 8, WK + 12, WK + 48, WK + 52, WK + 53
    for r in range(4):
        A(f"v_mov_b32_dpp v{S1+r}, v{G0_+r} row_newbcast:8 row_mask:0xf bank_mask:0xf")
    for r in range(4):
        A(f"v_mov_b32_dpp v{S2+r}, v{G0_+r} row_newbcast:{r} row_mask:0xd bank_mask:0xf")
        A(f"v_mov_b32_dpp v{S2+r}, v{G0_+r} row_newbcast:{4+r} row_mask:0x2 bank_mask:0xf")
    A(f"v_mov_b32 v{CT}, v{D0_}")
    A(f"v_mov_b32 v{CS}, 0")
    A(f"v_permlane32_swap_b32 v{CT}, v{CS}")
    for r in range(4):
        A(f"v_mul_f32 v{S1+r}, {sINV512}, v{S1+r}")
        A(f"v_mul_f32 v{S2+r}, {sINV512}, v{S2+r}")
        A(f"v_fma_f32 v{S2+r}, -v{S1+r}, v{S1+r}, v{S2+r}")
        A(f"v_max_f32 v{S2+r}, 0, v{S2+r}")
        A(f"v_add_f32 v{S2+r}, {sEPS}, v{S2+r}")
        A(f"v_rsq_f32 v{S2+r}, v{S2+r}")
        A(f"v_fma_f32 v{QV+r}, -v{S1+r}, v{CS}, v{D0_+r}")
        A(f"v_mul_f32 v{QV+r}, v{QV+r}, v{S2+r}")
    for r in range(4):
        A(f"v_mov_b32_dpp v{S1+r}, v{QV+r} quad_perm:[1,0,3,2] row_mask:0xf bank_mask:0xf")
    for r in range(4):
        A(f"v_cvt_pk_bf16_f32 v{W0_+2*r}, v{QV+r}, v{S1+r}")
        A(f"v_mov_b32 v{W0_+2*r+1}, {sNONCE}")
    A(f"v_lshrrev_b32 {vT[9]}, 1, {vI_}")
    A(f"v_lshlrev_b32 {vT[9]}, 3, {vT[9]}")
    A(f"v_lshl_add_u32 {vT[9]}, {vS_}, 8, {vT[9]}")
    A(f"s_lshl_b32 {sT0}, {sJ}, 9")
    A(f"s_add_u32 {sT0}, {sT0}, {hex(G_Q0)}")
    A("s_mov_b32 exec_lo, 0x55555555")
    A("s_mov_b32 exec_hi, 0")
    for r in range(4):
        A(f"buffer_store_dwordx2 v[{W0_+2*r}:{W0_+2*r+1}], {vT[9]}, {srd(S_G)}, {sT0} offen offset:{r*64} sc1")
    A("s_mov_b64 exec, -1")
    A(f"v_and_b32 {vXO1}, 0xffff0000, {vXO0}")
    A(f"v_lshlrev_b32 {vXO0}, 16, {vXO0}")
    ts(2)


def gather_issue():
    A(f"v_lshrrev_b32 v248, 1, {vLANE}")
    A(f"v_lshlrev_b32 v248, 9, v248")
    A(f"v_and_b32 v249, 1, {vLANE}")
    A(f"v_lshl_add_u32 v248, v249, 5, v248")
    A(f"s_lshl_b32 {sT0}, {sB}, 6")
    A(f"s_add_u32 {sT0}, {sT0}, {hex(G_Q0)}")
    A(f"buffer_load_dwordx4 v[240:243], v248, {srd(S_G)}, {sT0} offen sc1")
    A(f"buffer_load_dwordx4 v[244:247], v248, {srd(S_G)}, {sT0} offen offset:16 sc1")


def gather_test(lfail):
    A(f"v_xor_b32 {vT[6]}, {sNONCE}, v241")
    A(f"v_xor_b32 {vT[7]}, {sNONCE}, v243")
    A(f"v_xor_b32 {vT[8]}, {sNONCE}, v245")
    A(f"v_xor_b32 {vT[9]}, {sNONCE}, v247")
    A(f"v_or3_b32 {vT[6]}, {vT[6]}, {vT[7]}, {vT[8]}")
    A(f"v_or_b32 {vT[6]}, {vT[6]}, {vT[9]}")
    A(f"v_cmp_ne_u32 vcc, 0, {vT[6]}")
    A(f"s_cbranch_vccnz {lfail}")


def gather_commit():
    A("v_mov_b32 v241, v242")
    A("v_mov_b32 v242, v244")
    A("v_mov_b32 v243, v246")
    A(f"v_lshrrev_b32 v248, 2, {vLANE}")
    A(f"v_and_b32 v248, 3, v248")
    A(f"v_lshlrev_b32 v248, 8, v248")
    A(f"v_and_b32 v249, 3, {vLANE}")
    A(f"v_lshl_add_u32 v248, v249, 6, v248")
    A(f"v_lshrrev_b32 v249, 4, {vLANE}")
    A(f"v_lshl_add_u32 v248, v249, 4, v248")
    A(f"v_add_u32 v248, {QBUF}, v248")
    A("ds_write_b128 v248, v[240:243]")
    A("s_waitcnt lgkmcnt(0)")
    A(f"v_mov_b32 v248, {FLAG}")
    A("v_mov_b32 v249, 1")
    A("ds_write_b32 v248, v249 offset:16")
    A(f"s_mov_b32 {sQDONE}, 1")
    ts(3)


def hook_gather_try():
    lf = A.newlabel("L_gt_f"); le = A.newlabel("L_gt_e")
    A(f"s_cmp_eq_u32 {sQDONE}, 1")
    A(f"s_cbranch_scc1 {le}")
    gather_test(lf)
    gather_commit()
    A(f"s_branch {le}")
    A.label(lf)
    gather_issue()
    A.label(le)


def gather_final():
    lp = A.newlabel("L_gq"); lf = A.newlabel("L_gq_f"); le = A.newlabel("L_gq_e")
    A(f"s_cmp_eq_u32 {sQDONE}, 1")
    A(f"s_cbranch_scc1 {le}")
    A.label(lp)
    A("s_waitcnt vmcnt(0)")
    gather_test(lf)
    gather_commit()
    A(f"s_branch {le}")
    A.label(lf)
    gather_issue()
    A(f"s_sub_u32 {sSPIN}, {sSPIN}, 1")
    A("s_cbranch_scc1 L_END")
    A(f"s_branch {lp}")
    A.label(le)


def stream(Dsched, hooks, cnt_at, ring=2, wopf=True):
    done = set()
    cntA_at = PI + Dsched(PI)
    for i in range(FIRST, 32):
        D = Dsched(i)
        if i >= D:
            A(f"s_waitcnt vmcnt({D-1})")
        for n in range(8):
            if n not in done and 4 * n + 3 <= i - D:
                readout(n, ring)
                done.add(n)
        if i >= 4 * ring and i % 4 == 0:
            assert (i // 4 - ring) in done, (i, D, ring)
            A("s_waitcnt lgkmcnt(0)")
        if i == PI and not NOWQP:
            A(f"s_mov_b32 {sM0SAVE}, m0")
            wq_pieces()
            A(f"s_mov_b32 m0, {sM0SAVE}")
        if i == cntA_at:
            lds_inc(4)
            ts(29)
        if i == cnt_at:
            lds_inc(12)
        if i in hooks:
            A(f"s_mov_b32 {sM0SAVE}, m0")
            hooks[i]()
            A(f"s_mov_b32 m0, {sM0SAVE}")
        kv_one(i, ring)
        if i == 15:
            ts(26)
    if wopf:
        wo_prefetch()
    for n in range(4, 8 if ring == 4 else 7):
        if n not in done:
            A(f"s_waitcnt vmcnt({31 - (4*n+3) + (2 if wopf else 0)})")
            readout(n, ring)


A(f"s_cmp_eq_u32 {sW}, 0")
A("s_cbranch_scc0 L_NOTW0")
AI = FIRST + D0 + 2
QF = max(PI + D0 + 1, AI + 1)
GI2 = QF + GGAP
PA = opt("pa", 31 - D0)
A(f"s_mov_b32 {sQDONE}, 0")
w0hooks = {FIRST: hook_nonce_issue, AI: hook_arrive, QF: hook_q1_final}
gi = GI2
w0hooks[gi] = gather_issue
while gi + D0 <= 31:
    w0hooks[gi + D0] = hook_gather_try
    gi += D0
PAI = next(i for i in range(QF + 2, 31) if i not in w0hooks and (i + D0) not in w0hooks and i + D0 <= 31)
w0hooks[PAI] = hook_poll
w0hooks[PAI + D0] = hook_check
stream(lambda i: D0, w0hooks, FIRST + D0, ring=4, wopf=False)
gather_final()
wo_prefetch()
A("s_branch L_STRM_DONE")
A.label("L_NOTW0")
A(f"s_cmp_lt_u32 {sW}, 4")
A("s_cbranch_scc0 L_CSTREAM")
stream(lambda i: DK if i < 16 else DV, {}, FIRST + DK)
if PREWARM:
    A(f"v_mov_b32 {vT[5]}, {FLAG}")
    A.label("L_fw")
    A(f"ds_read_b32 {vT[6]}, {vT[5]}")
    A(f"s_sub_u32 {sSPIN}, {sSPIN}, 1")
    A("s_cbranch_scc1 L_END")
    A("s_waitcnt lgkmcnt(0)")
    A(f"v_cmp_eq_u32 vcc, 0, {vT[6]}")
    A("s_cbranch_vccnz L_fw")
    A(f"s_mul_i32 {sT0}, {sJ}, 7168")
    A(f"s_add_u32 {sT0}, {sT0}, {G_CLR0}")
    A(f"s_sub_u32 {sT1}, {sW}, 1")
    A(f"s_mul_i32 {sT1}, {sT1}, 3072")
    A(f"s_add_u32 {sT0}, {sT0}, {sT1}")
    A(f"v_lshl_add_u32 {vT[5]}, {vLANE}, 4, {sT0}")
    for i in range(3):
        A(f"buffer_load_dwordx4 {vq(DUMMY)}, {vT[5]}, {srd(S_G)}, 0 offen offset:{i*1024} sc1")
A("s_branch L_STRM_DONE")
A.label("L_CSTREAM")
stream(lambda i: DK if i < 16 else DV, {}, FIRST + DK)
A.label("L_STRM_DONE")
ts(4)
lds_spin(16, 1, "L_QRDY")
A(f"v_and_b32 {vT[7]}, 3, {vLANE}")
A(f"v_lshlrev_b32 {vT[7]}, 4, {vT[7]}")
A(f"v_lshrrev_b32 {vT[8]}, 4, {vLANE}")
A(f"v_lshl_add_u32 {vT[7]}, {vT[8]}, 6, {vT[7]}")
A(f"v_add_u32 {vT[7]}, {QBUF}, {vT[7]}")
QOP = WK
for c in range(4):
    A(f"ds_read_b128 {vq(QOP+4*c)}, {vT[7]} offset:{c*256}")
A("s_waitcnt lgkmcnt(0)")
A(f"s_mov_b32 {sL}, 0")
ts(5)
A("s_branch L_ATT")


def finalize_partial_and_ar(soff_ar, tsb):
    R = WK
    A(f"v_add_u32 {vT[1]}, 16, {vFA}")
    rd4(R, vFA, 0)
    rd4(R + 4, vT[1], 0)
    A(f"v_mov_b32 v{R+9}, {sNONCE}")
    A(f"v_mov_b32 v{R+11}, {sNONCE}")
    A(f"v_lshlrev_b32 {vT[2]}, 4, {vLANE}")
    A(f"v_add_u32 {vT[3]}, 4096, {vT[2]}")
    A("s_waitcnt lgkmcnt(0)")
    sum4(f"v{R+8}", R)
    sum4(f"v{R+10}", R + 4)
    A(f"buffer_store_dwordx4 v[{R+8}:{R+11}], {vAST}, {srd(S_AR)}, {soff_ar} offen sc1")
    ts(tsb, True)
    Q = R + 12
    lp = A.newlabel("L_arp")
    if DLY_AR:
        A(f"s_sleep {DLY_AR}")
    A.label(lp)
    for gg in range(8):
        A(f"buffer_load_dwordx4 {vq(Q+4*gg)}, {vT[2 + (gg >> 2)]}, {srd(S_AR)}, {soff_ar} offen offset:{(gg & 3)*1024} sc1")
    A(f"s_sub_u32 {sSPIN}, {sSPIN}, 1")
    A("s_cbranch_scc1 L_END")
    A("s_waitcnt vmcnt(0)")
    tags = [Q + 4 * gg + k for gg in range(8) for k in (1, 3)]
    A(f"v_min3_u32 {vT[5]}, v{tags[0]}, v{tags[1]}, v{tags[2]}")
    A(f"v_max3_u32 {vT[6]}, v{tags[0]}, v{tags[1]}, v{tags[2]}")
    i = 3
    while i < 16:
        if i + 1 < 16:
            A(f"v_min3_u32 {vT[5]}, {vT[5]}, v{tags[i]}, v{tags[i+1]}")
            A(f"v_max3_u32 {vT[6]}, {vT[6]}, v{tags[i]}, v{tags[i+1]}")
            i += 2
        else:
            A(f"v_min_u32 {vT[5]}, {vT[5]}, v{tags[i]}")
            A(f"v_max_u32 {vT[6]}, {vT[6]}, v{tags[i]}")
            i += 1
    A(f"v_xor_b32 {vT[5]}, {sNONCE}, {vT[5]}")
    A(f"v_xor_b32 {vT[6]}, {sNONCE}, {vT[6]}")
    A(f"v_or_b32 {vT[5]}, {vT[5]}, {vT[6]}")
    A(f"v_cmp_ne_u32 vcc, 0, {vT[5]}")
    A(f"s_cbranch_vccnz {lp}")
    B = R + 44
    for k in (0, 1):
        A(f"v_add_f32 v{B+k}, v{Q+2*k}, v{Q+4+2*k}")
        A(f"v_add_f32 v{B+2+k}, v{Q+8+2*k}, v{Q+12+2*k}")
        A(f"v_add_f32 v{B+4+k}, v{Q+16+2*k}, v{Q+20+2*k}")
        A(f"v_add_f32 v{B+6+k}, v{Q+24+2*k}, v{Q+28+2*k}")
    for k in (0, 1):
        A(f"v_add_f32 v{B+k}, v{B+k}, v{B+2+k}")
        A(f"v_add_f32 v{B+4+k}, v{B+4+k}, v{B+6+k}")
    for k in (0, 1):
        A(f"v_add_f32 v{B+k}, v{B+k}, v{B+4+k}")
    A(f"v_cvt_pk_bf16_f32 {vT[1]}, v{B}, v{B+1}")
    A(f"v_lshlrev_b32 v{B}, 16, {vT[1]}")
    A(f"v_and_b32 v{B+1}, 0xffff0000, {vT[1]}")
    A(f"v_add_f32 v{B}, v{B}, {vXO0}")
    A(f"v_add_f32 v{B+1}, v{B+1}, {vXO1}")
    A(f"v_cvt_pk_bf16_f32 {vT[1]}, v{B}, v{B+1}")
    A(f"v_lshlrev_b32 {vXO0}, 16, {vT[1]}")
    A(f"v_and_b32 {vXO1}, 0xffff0000, {vT[1]}")
    sanitize(vT[1])


A.label("L_LAYER")
lq = A.newlabel("L_q_nc")
role_compute(lq)
init_ones(4)
wread(WA, vWQ, 0, 4)
xpoll(vXOFF, sOXA, 4, SL_X)
A("s_waitcnt lgkmcnt(0)")
ts(20, True)
q_partial_tail()
A.label(lq)
A("s_barrier")
lq2 = A.newlabel("L_q_nf")
role_w0(lq2)
q_finalize()
sanitize(vT[1])
group_store(f"buffer_store_dword {vT[1]}, {vQST}, {srd(S_G)}, {sOQ} offen")
ts(21, True)
A.label(lq2)
for i in range(16):
    A(f"v_mov_b32 v{QOP+i}, 0")
A("s_barrier")


def qissue():
    A("s_mov_b32 exec_lo, 0x000f000f")
    A("s_mov_b32 exec_hi, 0x000f000f")
    for c in range(4):
        A(f"buffer_load_dwordx4 {vq(QOP+4*c)}, {vQOFF}, {srd(S_G)}, {sOQ} offen offset:{c*256} sc1")
    A("s_mov_b64 exec, -1")


poll(qissue, range(QOP, QOP + 16), SL_Q)
ts(22, True)

A.label("L_ATT")
A(f"s_lshl_b32 {sT0}, {sL}, 13")
A(f"s_add_u32 {sOON}, {sT0}, {hex(G_ON)}")
A(f"s_lshl_b32 {sT1}, {sL}, 14")
A(f"s_add_u32 {sOXO1}, {sT1}, {hex(G_XA)}")
A(f"s_mul_i32 {sT1}, {sL}, {32*OPS}")
A(f"s_add_u32 {sOOP}, {sT1}, {hex(G_OP)}")
A(f"s_lshl_b32 {sT1}, {sL}, 12")
A(f"s_add_u32 {sOH}, {sT1}, {hex(G_H)}")
A(f"s_lshl_b32 {sOAR1}, {sL}, 19")
A(f"s_add_u32 {sOAR2}, {sOAR1}, 0x40000")
SC = WK + 36
PQ = WK + 52
OA = WK
LA = WK + 32
for T in range(4):
    for c in range(4):
        cc = "0" if c == 0 else vq(SC + 4 * T)
        A(f"v_mfma_f32_16x16x32_bf16 {vq(SC+4*T)}, {vq(KREG+(4*T+c)*4)}, {vq(QOP+4*c)}, {cc}")
m0, m1 = vT[0], vT[1]
A(f"v_max3_f32 {m0}, v{SC}, v{SC+1}, v{SC+2}")
A(f"v_max3_f32 {m1}, v{SC+4}, v{SC+5}, v{SC+6}")
A(f"v_max3_f32 {m0}, {m0}, v{SC+3}, v{SC+7}")
A(f"v_max3_f32 {m1}, {m1}, v{SC+8}, v{SC+9}")
A(f"v_max3_f32 {m0}, {m0}, v{SC+10}, v{SC+11}")
A(f"v_max3_f32 {m1}, {m1}, v{SC+12}, v{SC+13}")
A(f"v_max3_f32 {m0}, {m0}, v{SC+14}, v{SC+15}")
A(f"v_max_f32 {m0}, {m0}, {m1}")
A(f"v_mov_b32 {m1}, {m0}")
A(f"v_permlane32_swap_b32 {m0}, {m1}")
A(f"v_max_f32 {m0}, {m0}, {m1}")
A(f"v_mov_b32 {m1}, {m0}")
A(f"v_permlane16_swap_b32 {m0}, {m1}")
A(f"v_max_f32 {m0}, {m0}, {m1}")
MP = vT[2]
A(f"v_mul_f32 {MP}, {sC1}, {m0}")
for i in range(16):
    A(f"v_fma_f32 v{SC+i}, v{SC+i}, {sC1}, -{MP}")
for i in range(16):
    A(f"v_exp_f32 v{SC+i}, v{SC+i}")
for u in range(2):
    for k in range(4):
        A(f"v_cvt_pk_bf16_f32 v{PQ+4*u+k}, v{SC+8*u+2*k}, v{SC+8*u+2*k+1}")
ts(6, True)


def v_stage():
    l = A.newlabel("L_vs")
    A(f"s_cmp_eq_u32 {sL}, 0")
    A(f"s_cbranch_scc0 {l}")
    A(f"s_cmp_eq_u32 {sW}, 0")
    A(f"s_cbranch_scc1 {l}")
    A("s_waitcnt vmcnt(2)")
    readout(7)
    A("s_waitcnt lgkmcnt(0)")
    A.label(l)


for u in range(2):
    if u == 1:
        v_stage()
    for dt in range(8):
        cc = "0" if u == 0 else vq(OA + 4 * dt)
        A(f"v_mfma_f32_16x16x32_bf16 {vq(OA+4*dt)}, {vq(VREG+(8*u+dt)*4)}, {vq(PQ+4*u)}, {cc}")
    cc = "0" if u == 0 else vq(LA)
    A(f"v_mfma_f32_16x16x32_bf16 {vq(LA)}, {vq(ONES)}, {vq(PQ+4*u)}, {cc}")
ts(7, True)
for half in range(2):
    for cg in range(1, 4):
        for r in range(4):
            A(f"v_mov_b32_dpp v{OA+16*half+r}, v{OA+16*half+4*cg+r} row_shr:{4*cg} row_mask:0xf bank_mask:{hex(1 << cg)}")
    A(f"ds_write_b128 {vOPW}, {vq(OA+16*half)} offset:{half*256}")
A("s_mov_b64 exec, 0xf")
A(f"v_mov_b32 {vT[4]}, {MP}")
A(f"v_mov_b32 {vT[5]}, v{LA}")
A(f"ds_write_b64 {vSTW}, v[48:49]")
A("s_mov_b64 exec, -1")
A("s_waitcnt lgkmcnt(0)")
A("s_barrier")
A(f"v_mov_b32 {vT[6]}, {FLAG}")
A(f"ds_read_b32 {vT[7]}, {vT[6]}")
R = WK
for w in range(8):
    A(f"ds_read_b64 v[{R+8+2*w}:{R+9+2*w}], {vSTR} offset:{w*32}")
for w in range(8):
    A(f"ds_read_b32 v{R+w}, {vOPR0} offset:{w*8192}")
A("s_waitcnt lgkmcnt(8)")
A(f"v_readfirstlane_b32 {sMODE}, {vT[7]}")
MM = vT[0]
A(f"v_max3_f32 {MM}, v{R+8}, v{R+10}, v{R+12}")
A(f"v_max3_f32 {MM}, {MM}, v{R+14}, v{R+16}")
A(f"v_max3_f32 {MM}, {MM}, v{R+18}, v{R+20}")
A(f"v_max_f32 {MM}, {MM}, v{R+22}")
for w in range(8):
    A(f"v_sub_f32 v{R+8+2*w}, v{R+8+2*w}, {MM}")
for w in range(8):
    A(f"v_exp_f32 v{R+8+2*w}, v{R+8+2*w}")
OO, LL = vT[4], vT[5]
A("s_waitcnt lgkmcnt(0)")
A(f"v_mul_f32 {OO}, v{R}, v{R+8}")
A(f"v_mul_f32 {LL}, v{R+9}, v{R+8}")
for w in range(1, 8):
    A(f"v_fmac_f32 {OO}, v{R+w}, v{R+8+2*w}")
    A(f"v_fmac_f32 {LL}, v{R+9+2*w}, v{R+8+2*w}")
sanitize(OO)
group_store(f"buffer_store_dword {OO}, {vOPS}, {srd(S_G)}, {sOOP} offen")
lst = A.newlabel("L_nst")
A(f"s_and_b32 {sT0}, {sW}, 1")
A(f"s_cmp_eq_u32 {sT0}, 0")
A(f"s_cbranch_scc0 {lst}")
A(f"v_min_u32 {vT[6]}, {vSENT}, {MM}")
A(f"v_min_u32 {vT[7]}, {vSENT}, {LL}")
A(f"s_mul_i32 {sT0}, {sJ}, {OPS}")
A(f"s_lshl_b32 {sT1}, {sW}, 2")
A(f"s_add_u32 {sT0}, {sT0}, {sT1}")
A(f"s_add_u32 {sT0}, {sT0}, 2048")
A(f"v_mov_b32 {vT[8]}, {sT0}")
A("s_mov_b64 exec, 1")
group_store(f"buffer_store_dwordx2 v[50:51], {vT[8]}, {srd(S_G)}, {sOOP} offen")
A("s_mov_b64 exec, -1")
A.label(lst)
ts(8, True)
lgu = A.newlabel("L_ngu")
A(f"s_cmp_eq_u32 {sL}, 0")
A(f"s_cbranch_scc0 {lgu}")
A(f"s_cmp_eq_u32 {sW}, 0")
A(f"s_cbranch_scc1 {lgu}")
lguc = A.newlabel("L_guc")
A(f"s_cmp_gt_u32 {sW}, 3")
A(f"s_cbranch_scc0 {lguc}")
A(f"s_lshl_b32 {sT0}, {sG}, 19")
A(f"s_lshl_b32 {sT1}, {sJ}, 5")
A(f"s_add_u32 {sT0}, {sT0}, {sT1}")
A(f"s_sub_u32 {sT1}, 0x400000, {sT0}")
make_srd(S_T, P_WO, off_sgpr=sT0, size=sT1)
A(f"v_lshrrev_b32 {vT[6]}, 1, {vLANE}")
A(f"v_and_b32 {vT[7]}, 1, {vLANE}")
A(f"v_lshlrev_b32 {vT[7]}, 4, {vT[7]}")
A(f"v_lshl_add_u32 {vT[6]}, {vT[6]}, 10, {vT[7]}")
A(f"s_lshl_b32 {sT0}, {sCW}, 17")
A(f"s_mul_i32 {sT2}, {sCW}, {WSTR}")
for i in range(4):
    A(f"s_add_u32 m0, {sT2}, {WBASE + W_WO + i*1024}")
    A(f"s_add_u32 {sT1}, {sT0}, {i*32*1024}")
    A(f"buffer_load_dwordx4 {vT[6]}, {srd(S_T)}, {sT1} offen{WNT} lds")
A(f"s_branch {lgu}")
A.label(lguc)
A(f"v_lshrrev_b32 {vT[4]}, 1, {vLANE}")
A(f"v_and_b32 {vT[5]}, 1, {vLANE}")
A(f"v_lshlrev_b32 {vT[5]}, 4, {vT[5]}")
ldn = A.newlabel("L_dn")
A(f"s_cmp_eq_u32 {sW}, 3")
A(f"s_cbranch_scc1 {ldn}")
A(f"s_lshl_b32 {sT0}, {sG}, 5")
A(f"s_add_u32 {sT0}, {sT0}, {sJ}")
A(f"s_mul_i32 {sT0}, {sT0}, 14")
A(f"s_and_b32 {sT0}, {sT0}, 0xfffffff0")
A(f"s_sub_u32 {sT1}, {512*3584}, {sT0}")
A(f"s_cmp_eq_u32 {sW}, 1")
A(f"s_cselect_b32 {sT2}, s{P_WG}, s{P_WU}")
A(f"s_cselect_b32 {sT3}, s{P_WG+1}, s{P_WU+1}")
A(f"s_cselect_b32 {sT4}, 0, {W_U - W_G}")
A(f"s_add_u32 s{S_T}, {sT2}, {sT0}")
A(f"s_addc_u32 s{S_T+1}, {sT3}, 0")
A(f"s_mov_b32 s{S_T+2}, {sT1}")
A(f"s_mov_b32 s{S_T+3}, 0x20000")
A(f"s_mov_b32 s{S_T2}, {sT2}")
A(f"s_mov_b32 s{S_T2+1}, {sT3}")
A(f"s_mov_b32 s{S_T2+2}, {512*3584}")
A(f"s_mov_b32 s{S_T2+3}, 0x20000")
A(f"v_lshrrev_b32 {vT[7]}, 5, {vLANE}")
A(f"v_mul_u32_u24 {vT[7]}, 3584, {vT[7]}")
A(f"v_and_b32 {vT[8]}, 31, {vLANE}")
A(f"v_lshl_add_u32 {vT[7]}, {vT[8]}, 4, {vT[7]}")
A(f"s_mul_i32 {sT0}, {sG}, 448")
A(f"s_and_b32 {sT0}, {sT0}, 0xffffff80")
A(f"s_mul_i32 {sT1}, {sJ}, {16*3584}")
A(f"s_add_u32 {sT0}, {sT0}, {sT1}")
for i in range(8):
    A(f"buffer_load_dwordx4 {vq(DUMMY)}, {vT[7]}, {srd(S_T2)}, {sT0} offen{PFNT}")
    if i < 7:
        A(f"s_add_u32 {sT0}, {sT0}, {2*3584}")
A(f"v_mul_u32_u24 {vT[6]}, 3584, {vT[4]}")
A(f"v_add_u32 {vT[6]}, {vT[6]}, {vT[5]}")
A("s_waitcnt vmcnt(0)")
A(f"s_sleep {PFSL}")
for cw in range(4):
    for i in range(4):
        A(f"s_add_u32 m0, {sT4}, {WBASE + W_G + cw*WSTR + i*1024}")
        A(f"s_mov_b32 {sT1}, {(128*cw + 32*i)*3584}")
        A(f"buffer_load_dwordx4 {vT[6]}, {srd(S_T)}, {sT1} offen{WNT} lds")
A(f"s_branch {lgu}")
A.label(ldn)
A(f"s_mul_i32 {sT0}, {sG}, {224*1024}")
A(f"s_lshl_b32 {sT1}, {sJ}, 5")
A(f"s_add_u32 {sT0}, {sT0}, {sT1}")
A(f"s_sub_u32 {sT1}, {1792*1024}, {sT0}")
make_srd(S_T, P_WD, off_sgpr=sT0, size=sT1)
make_srd(S_T2, P_WD, size=1792*1024)
A(f"s_mul_i32 {sT0}, {sG}, 224")
A(f"s_mul_i32 {sT1}, {sJ}, 7")
A(f"s_add_u32 {sT0}, {sT0}, {sT1}")
A(f"s_lshl_b32 {sT0}, {sT0}, 10")
A(f"v_lshlrev_b32 {vT[7]}, 4, {vLANE}")
for i in range(7):
    A(f"buffer_load_dwordx4 {vq(DUMMY)}, {vT[7]}, {srd(S_T2)}, {sT0} offen{PFNT}")
    if i < 6:
        A(f"s_add_u32 {sT0}, {sT0}, 1024")
A("s_waitcnt vmcnt(0)")
A(f"s_sleep {PFSL}")
A(f"v_lshrrev_b32 {vT[6]}, 3, {vT[4]}")
A(f"v_mul_u32_u24 {vT[6]}, 7, {vT[6]}")
A(f"v_and_b32 {vT[7]}, 7, {vT[4]}")
A(f"v_add_u32 {vT[6]}, {vT[6]}, {vT[7]}")
A(f"v_lshl_add_u32 {vT[6]}, {vT[6]}, 10, {vT[5]}")
A(f"v_mov_b32 {vT[8]}, 0x40000000")
A(f"v_cmp_eq_u32 vcc, 7, {vT[7]}")
A(f"v_cndmask_b32 {vT[6]}, {vT[6]}, {vT[8]}, vcc")
for cw in range(4):
    for i in range(2):
        A(f"s_mov_b32 m0, {WBASE + cw*WSTR + W_D + i*1024}")
        A(f"s_mov_b32 {sT1}, {(56*cw + 28*i)*1024}")
        A(f"buffer_load_dwordx4 {vT[6]}, {srd(S_T)}, {sT1} offen{WNT} lds")
A.label(lgu)
if STOP == "att":
    A("s_branch L_FIN")

lh1 = A.newlabel("L_nh1")
role_w0(lh1)
R = WK


def h1issue():
    A(f"buffer_load_dwordx2 v[{R}:{R+1}], {vH1a}, {srd(S_G)}, {sOOP} offen sc1")
    A(f"buffer_load_dwordx2 v[{R+2}:{R+3}], {vH1a}, {srd(S_G)}, {sOOP} offen offset:{OPS} sc1")
    A(f"buffer_load_dwordx2 v[{R+4}:{R+5}], {vH1b}, {srd(S_G)}, {sOOP} offen sc1")
    A(f"buffer_load_dwordx2 v[{R+6}:{R+7}], {vH1b}, {srd(S_G)}, {sOOP} offen offset:{OPS} sc1")
    A(f"buffer_load_dwordx2 v[{R+8}:{R+9}], {vH1sa}, {srd(S_G)}, {sOOP} offen sc1")
    A(f"buffer_load_dwordx2 v[{R+10}:{R+11}], {vH1sa}, {srd(S_G)}, {sOOP} offen offset:{OPS} sc1")
    A(f"buffer_load_dwordx2 v[{R+12}:{R+13}], {vH1sb}, {srd(S_G)}, {sOOP} offen sc1")
    A(f"buffer_load_dwordx2 v[{R+14}:{R+15}], {vH1sb}, {srd(S_G)}, {sOOP} offen offset:{OPS} sc1")


poll(h1issue, range(R, R + 16))
MM = vT[0]
A(f"v_max3_f32 {MM}, v{R+8}, v{R+10}, v{R+12}")
A(f"v_max_f32 {MM}, {MM}, v{R+14}")
for s in range(4):
    A(f"v_sub_f32 v{R+8+2*s}, v{R+8+2*s}, {MM}")
for s in range(4):
    A(f"v_exp_f32 v{R+8+2*s}, v{R+8+2*s}")
A(f"v_mul_f32 {vT[1]}, v{R+9}, v{R+8}")
A(f"v_mul_f32 {vT[2]}, v{R}, v{R+8}")
A(f"v_mul_f32 {vT[3]}, v{R+1}, v{R+8}")
for s in range(1, 4):
    A(f"v_fmac_f32 {vT[1]}, v{R+9+2*s}, v{R+8+2*s}")
    A(f"v_fmac_f32 {vT[2]}, v{R+2*s}, v{R+8+2*s}")
    A(f"v_fmac_f32 {vT[3]}, v{R+2*s+1}, v{R+8+2*s}")
A(f"v_rcp_f32 {vT[1]}, {vT[1]}")
A(f"v_mul_f32 {vT[2]}, {vT[2]}, {vT[1]}")
A(f"v_mul_f32 {vT[3]}, {vT[3]}, {vT[1]}")
A(f"v_cvt_pk_bf16_f32 {vT[2]}, {vT[2]}, {vT[3]}")
sanitize(vT[2])
group_store(f"buffer_store_dword {vT[2]}, {vONS}, {srd(S_G)}, {sOON} offen")
ts(9, True)
A.label(lh1)
lwo0 = A.newlabel("L_nwo0")
role_compute(lwo0)
init_ones(4)
A("s_waitcnt vmcnt(0)")
ts(23, True)
wread(WA, vWOWN, W_WO, 4)
A.label(lwo0)
A("s_barrier")
lwo = A.newlabel("L_nwo2")
role_compute(lwo)
xpoll(vXOFF, sOON, 4, SL_ON)
A("s_waitcnt lgkmcnt(0)")
ts(10, True)
chain(AC0, WA, 4)
A(f"ds_write_b128 {vPW}, {vq(AC0)}")
A("s_waitcnt lgkmcnt(0)")
A.label(lwo)
A("s_barrier")
lwf = A.newlabel("L_nwf")
role_w0(lwf)
finalize_partial_and_ar(sOAR1, 11)
group_store(f"buffer_store_dword {vT[1]}, {vXST}, {srd(S_G)}, {sOXO1} offen")
ts(12, True)
A.label(lwf)
lnw = A.newlabel("L_nwait")
A(f"s_cmp_eq_u32 {sW}, 0")
A(f"s_cbranch_scc1 {lnw}")
A("s_waitcnt vmcnt(0)")
A.label(lnw)
A("s_barrier")
if STOP == "x1":
    A("s_branch L_FIN")

lg = A.newlabel("L_ng")
role_compute(lg)
init_ones(4)
wread(WA, vWOWN, W_G, 4)
wread(WB, vWOWN, W_U, 4)
xpoll(vXOFF, sOXO1, 4, SL_X)
A("s_waitcnt lgkmcnt(0)")
ts(13, True)
gram(AC2, 4)
chain(AC0, WA, 4)
chain(AC1, WB, 4)
A(f"ds_write_b128 {vPW}, {vq(AC2)} offset:2048")
A(f"ds_write_b128 {vPW}, {vq(AC0)}")
A(f"ds_write_b128 {vPW}, {vq(AC1)} offset:1024")
A("s_waitcnt lgkmcnt(0)")
A.label(lg)
A("s_barrier")
lgf = A.newlabel("L_ngf")
role_w0(lgf)
R = WK
rd4(R + 16, vFS1, 0)
rd4(R + 20, vFS2, 0)
rd4(R, vFG, 0)
rd4(R + 4, vFG, 4)
rd4(R + 8, vFCG, 0)
rd4(R + 12, vFCG, 4)
A("s_waitcnt lgkmcnt(8)")
sum4(f"v{R+24}", R + 16)
sum4(f"v{R+25}", R + 20)
ln_stats(f"v{R+24}", f"v{R+25}")
A("s_waitcnt lgkmcnt(0)")
sum4(f"v{R+26}", R)
sum4(f"v{R+27}", R + 4)
sum4(f"v{R+28}", R + 8)
sum4(f"v{R+29}", R + 12)
A(f"v_fma_f32 v{R+26}, -v{R+24}, v{R+28}, v{R+26}")
A(f"v_fma_f32 v{R+27}, -v{R+24}, v{R+29}, v{R+27}")
A(f"v_mul_f32 v{R+26}, v{R+26}, v{R+25}")
A(f"v_mul_f32 v{R+27}, v{R+27}, v{R+25}")
A(f"v_mul_f32 v{R+26}, {sNLOG2E}, v{R+26}")
A(f"v_exp_f32 v{R+26}, v{R+26}")
A(f"v_add_f32 v{R+26}, 1.0, v{R+26}")
A(f"v_rcp_f32 v{R+26}, v{R+26}")
A(f"v_mul_f32 v{R+26}, v{R+26}, v{R+27}")
A(f"v_and_b32 {vT[1]}, 7, {vLANE}")
A(f"v_cmp_eq_u32 vcc, 7, {vT[1]}")
A(f"v_mov_b32 {vT[2]}, 0")
A(f"v_cndmask_b32 v{R+26}, v{R+26}, {vT[2]}, vcc")
A(f"v_mov_b32_dpp v{R+27}, v{R+26} quad_perm:[1,0,3,2] row_mask:0xf bank_mask:0xf")
A(f"v_cvt_pk_bf16_f32 {vT[1]}, v{R+26}, v{R+27}")
sanitize(vT[1])
A("s_mov_b32 exec_lo, 0x55555555")
A("s_mov_b32 exec_hi, 0x55555555")
group_store(f"buffer_store_dword {vT[1]}, {vHST}, {srd(S_G)}, {sOH} offen")
A("s_mov_b64 exec, -1")
ts(14, True)
A.label(lgf)
ld0 = A.newlabel("L_nd0")
role_compute(ld0)
init_ones(2)
wread(WA, vWOWN, W_D, 2)
A.label(ld0)
A("s_barrier")
if STOP == "h":
    A("s_branch L_FIN")
ld = A.newlabel("L_nd")
role_compute(ld)
xpoll(vHOFF, sOH, 2, SL_H)
A("s_waitcnt lgkmcnt(0)")
ts(15, True)
chain(AC0, WA, 2)
A(f"ds_write_b128 {vPW}, {vq(AC0)}")
A("s_waitcnt lgkmcnt(0)")
A.label(ld)
A("s_barrier")
ldf = A.newlabel("L_ndf")
role_w0(ldf)
finalize_partial_and_ar(sOAR2, 16)
llast = A.newlabel("L_last"); ldf2 = A.newlabel("L_ndf2")
A(f"s_cmp_eq_u32 {sL}, 1")
A(f"s_cbranch_scc1 {llast}")
A(f"s_mov_b32 {sT0}, {hex(G_XA + 0x2000)}")
group_store(f"buffer_store_dword {vT[1]}, {vXST}, {srd(S_G)}, {sT0} offen")
A(f"s_branch {ldf2}")
A.label(llast)
make_srd(S_T, P_OUT, size=8192)
A(f"v_lshrrev_b32 {vT[2]}, 3, {vLANE}")
A(f"v_cmp_eq_u32 vcc, {sG}, {vT[2]}")
A("s_and_saveexec_b64 s[84:85], vcc")
A(f"buffer_store_dword {vT[1]}, {vXNAT}, {srd(S_T)}, 0 offen")
A("s_mov_b64 exec, s[84:85]")
A.label(ldf2)
ts(17, True)
A.label(ldf)
A(f"s_cmp_eq_u32 {sL}, 1")
A("s_cbranch_scc1 L_FIN")
A("s_barrier")
if STOP == "x2":
    A("s_branch L_FIN")
A(f"s_mov_b32 {sL}, 1")
A(f"s_mov_b32 {sOXA}, {hex(G_XA + 0x2000)}")
A(f"s_mov_b32 {sOQ}, {hex(G_Q + 0x2000)}")
A("s_branch L_LAYER")

A.label("L_FIN")
if DBGT:
    lx = A.newlabel("L_dbgt")
    A(f"s_cmp_eq_u32 {sW}, 0")
    A(f"s_cbranch_scc0 {lx}")
    A("s_memrealtime s[90:91]")
    make_srd(S_T, P_DBG, size=256)
    A("s_waitcnt lgkmcnt(0)")
    A(f"v_mov_b32 {vT[0]}, s90")
    A(f"s_not_b32 s95, s95")
    A(f"v_mov_b32 {vT[1]}, s95")
    A(f"v_mov_b32 {vT[2]}, 0")
    A("s_mov_b64 exec, 1")
    A(f"buffer_atomic_umax {vT[0]}, {vT[2]}, {srd(S_T)}, 0 offen offset:16 sc1")
    A(f"buffer_atomic_umax {vT[1]}, {vT[2]}, {srd(S_T)}, 0 offen offset:20 sc1")
    A("s_mov_b64 exec, -1")
    A.label(lx)
if PROFILE:
    ts(30)
    ts(31)
    make_srd(S_T, P_WS, off_imm=TS_BASE, size=0x100000)
    A(f"s_lshl_b32 {sT0}, s2, 3")
    A(f"s_add_u32 {sT0}, {sT0}, {sW}")
    A(f"s_lshl_b32 {sT0}, {sT0}, 8")
    A(f"v_lshl_add_u32 {vT[0]}, {vLANE}, 2, {sT0}")
    A(f"buffer_store_dword {vTS}, {vT[0]}, {srd(S_T)}, 0 offen")
A("s_waitcnt vmcnt(0)")
A.label("L_END")
A("s_endpgm")
A('.section .rodata,"a"')
A(".p2align 6")
A(f".amdhsa_kernel {KN}")
A("  .amdhsa_next_free_vgpr 256")
A("  .amdhsa_next_free_sgpr 96")
A("  .amdhsa_accum_offset 256")
A("  .amdhsa_group_segment_fixed_size 0")
A("  .amdhsa_kernarg_size 96")
A("  .amdhsa_user_sgpr_count 2")
A("  .amdhsa_user_sgpr_kernarg_segment_ptr 1")
A("  .amdhsa_system_sgpr_workgroup_id_x 1")
A(".end_amdhsa_kernel")

print("\n".join(A.finalize()))
```
